```python
import torch

def _softmax(x, axis=-1):
    return torch.softmax(x, dim=axis)

def _gelu(x):
    return torch.nn.functional.gelu(x, approximate='tanh')

def _silu(x):
    return torch.nn.functional.silu(x)

def _sigmoid(x):
    return torch.sigmoid(x)

def _layernorm(x, axis=-1, eps=1e-05):
    m = x.mean(dim=axis, keepdim=True)
    v = x.var(dim=axis, keepdim=True, unbiased=False)
    return (x - m) / torch.sqrt(v + eps)

def _scatter_add(tgt, idx, src, axis=0):
    return tgt.clone().index_add_(axis, idx, src)

def _segment_sum(src, seg, n):
    out = torch.zeros((n,) + src.shape[1:], dtype=src.dtype)
    return out.index_add_(0, seg, src)

def _pad(x, pw):
    flat = tuple((v for pair in reversed(pw) for v in pair))
    return torch.nn.functional.pad(x, flat)
kernel_name = 'parallel_sum__linear_attn_block__mixer_gmlp__prompt'

def setup_inputs():

    _w = lambda a: (lambda t: t.to(torch.bfloat16) if t.is_floating_point() else t)(torch.as_tensor(a))

    def _A_setup():
        B, S, D = (1, 2048, 640)
        return {'x': _w((lambda *s: torch.randn(*s, dtype=torch.bfloat16) * 0.05)(B, S, D)), 'wqkv': _w((lambda *s: torch.randn(*s, dtype=torch.bfloat16) * 0.8)(D, 3 * D)), 'wo': _w((lambda *s: torch.randn(*s, dtype=torch.bfloat16) * 0.2)(D, D))}
    _A_in = _A_setup()

    def _B_setup():
        B, S, D, F = (1, 2048, 640, 1728)
        Fh = F // 2
        return {'x': _w((lambda *s: torch.randn(*s, dtype=torch.bfloat16) * 0.05)(B, S, D)), 'w_in': _w((lambda *s: torch.randn(*s, dtype=torch.bfloat16) * 0.4)(D, 2 * Fh)), 'w_sp': _w(0.01 * (lambda *s: torch.randn(*s, dtype=torch.bfloat16) * 0.4)(S, S)), 'b_sp': _w(1.0 + 0.01 * (lambda *s: torch.randn(*s, dtype=torch.bfloat16) * 0.05)(S)), 'w_out': _w((lambda *s: torch.randn(*s, dtype=torch.bfloat16) * 0.05)(Fh, D))}
    _B_in = _B_setup()
    return {'A_x': _A_in['x'], 'A_wqkv': _A_in['wqkv'], 'A_wo': _A_in['wo'], 'B_x': _B_in['x'], 'B_w_in': _B_in['w_in'], 'B_w_sp': _B_in['w_sp'], 'B_b_sp': _B_in['b_sp'], 'B_w_out': _B_in['w_out']}

def reference(A_x, A_wqkv, A_wo, B_x, B_w_in, B_w_sp, B_b_sp, B_w_out):

    def _A_ref(x, wqkv, wo):
        B, S, D = x.shape
        H = 32
        Dh = D // H
        qkv = (lambda x, *d: x.permute(*d))((x @ wqkv).reshape(B, S, 3, H, Dh), 2, 0, 3, 1, 4)
        q, k, v = (qkv[0], qkv[1], qkv[2])
        phi = lambda t: torch.where(t > 0, t + 1, torch.exp(t)) + 1e-06
        pq, pk = (phi(q), phi(k))
        kv = torch.einsum('bhsd,bhse->bhde', pk, v)
        z = torch.einsum('bhsd->bhd', pk)
        num = torch.einsum('bhqd,bhde->bhqe', pq, kv)
        den = torch.einsum('bhqd,bhd->bhq', pq, z)[..., None] + 1e-06
        o = num / den
        return (lambda x, *d: x.permute(*d))(o, 0, 2, 1, 3).reshape(B, S, D) @ wo

    def _B_ref(x, w_in, w_sp, b_sp, w_out):
        B, S, D = x.shape
        F = w_in.shape[-1]
        Fh = F // 2
        z = _gelu(torch.einsum('bsd,df->bsf', x, w_in))
        z1 = z[..., :Fh].clone()
        z2 = _layernorm(z[..., Fh:], axis=-1)
        g = torch.einsum('ts,bsf->btf', w_sp, z2) + b_sp[None, :, None]
        return torch.einsum('bsf,fd->bsd', z1 * g, w_out)
    x = A_x
    xn = _layernorm(x, axis=-1)
    return x + _A_ref(xn, A_wqkv, A_wo) + _B_ref(xn, B_w_in, B_w_sp, B_b_sp, B_w_out)
```

```python
import re

TRANS = ('v_exp_f32','v_log_f32','v_rcp_f32','v_rsq_f32','v_sqrt_f32','v_sin_f32','v_cos_f32')

def expand(tok):
    tok = tok.strip()
    tok = re.sub(r'^-', '', tok)
    m = re.match(r'^abs\((.*)\)$', tok)
    if m: tok = m.group(1)
    m = re.match(r'^\|(.*)\|$', tok)
    if m: tok = m.group(1)
    m = re.match(r'^([vsa])\[(\d+):(\d+)\]$', tok)
    if m:
        return [f'{m.group(1)}{i}' for i in range(int(m.group(2)), int(m.group(3))+1)]
    m = re.match(r'^([vsa])(\d+)$', tok)
    if m: return [tok]
    if tok == 'vcc': return ['vcc']
    if tok in ('vcc_lo','vcc_hi'): return ['vcc']
    if tok in ('exec','exec_lo','exec_hi'): return ['exec']
    if tok == 'm0': return ['m0']
    return []

def split_ops(s):
    out=[];depth=0;cur=''
    for ch in s:
        if ch in '[(': depth+=1
        if ch in '])': depth-=1
        if ch==',' and depth==0:
            out.append(cur.strip());cur=''
        else: cur+=ch
    if cur.strip(): out.append(cur.strip())
    return out

class Inst:
    __slots__=('text','mn','ops','mods','w','r','cls','ab','c','passes','data','target','ws')
    def __init__(self, text):
        self.text=text
        t=text.split(';')[0].strip()
        parts=t.split(None,1)
        mn=parts[0]; rest=parts[1] if len(parts)>1 else ''
        ops=split_ops(rest)
        mods=''
        if ops:
            lp=ops[-1].split(None,1)
            if len(lp)>1:
                ops[-1]=lp[0]; mods=lp[1]
        self.mn=mn; self.ops=ops; self.mods=mods
        self.w=set(); self.r=set(); self.ab=set(); self.c=set(); self.passes=0; self.data=set(); self.target=None; self.ws=1
        E=lambda i: set(expand(ops[i])) if i<len(ops) else set()
        allr=lambda a: set().union(*[E(i) for i in range(a,len(ops))]) if len(ops)>a else set()
        base=re.sub(r'_(e32|e64|dpp|sdwa)$','',mn)
        if mn.startswith('v_mfma'):
            self.cls='mfma'; self.w=E(0); self.ab=E(1)|E(2); self.c=E(3); self.r=self.ab|self.c
            if '16x16x32' in mn: self.passes=4
            elif '32x32x16' in mn: self.passes=8
            else: raise ValueError('unknown mfma '+mn)
        elif mn.startswith('v_'):
            self.cls='valu'
            if base in TRANS: self.cls='trans'
            if base.startswith('v_dot2'): self.cls='dot'
            if base.startswith('v_cmp'):
                self.w=E(0); self.r=allr(1)
                if base.startswith('v_cmpx'): self.w|={'exec'}
            elif base.startswith('v_permlane') and 'swap' in base:
                self.w=E(0)|E(1); self.r=E(0)|E(1); self.cls='permlane'
            elif base in ('v_readfirstlane_b32','v_readlane_b32'):
                self.w=E(0); self.r=allr(1); self.cls='readlane'
            elif base in ('v_add_co_u32','v_sub_co_u32','v_addc_co_u32'):
                self.w=E(0)|E(1); self.r=allr(2)
            else:
                self.w=E(0); self.r=allr(1)
                if base in ('v_fmac_f32','v_dot2c_f32_bf16') : self.r|=E(0)
                if base=='v_cndmask_b32' and len(ops)==3: self.r|={'vcc'}
                if mn.endswith('_dpp') : self.r|=E(0)
            if base=='v_dot2c_f32_bf16': self.c=E(0); self.ab=allr(1)
            if base=='v_dot2_f32_bf16': self.c=E(3); self.ab=E(1)|E(2)
        elif mn.startswith('ds_read') or mn.startswith('ds_bpermute') or mn.startswith('ds_swizzle'):
            self.cls='ds'; self.w=E(0); self.r=allr(1)
        elif mn.startswith('ds_'):
            self.cls='ds'; self.r=allr(0)
        elif mn.startswith('buffer_load') or mn.startswith('global_load'):
            self.cls='vmem'
            if re.search(r'\blds\b', mods) or 'load_lds' in mn:
                self.r=allr(0)|{'m0'}; self.cls='vmem_lds'
            else:
                self.w=E(0); self.r=allr(1)
        elif mn.startswith('buffer_store') or mn.startswith('buffer_atomic'):
            self.cls='vmem'; self.r=allr(0)
            if 'x4' in mn or 'x3' in mn: self.data=E(0)
            if mn.startswith('buffer_atomic') and re.search(r'\bsc0\b',mods): self.w=E(0)
        elif mn.startswith('global_store'):
            self.cls='vmem'; self.r=allr(0)
            if 'x4' in mn or 'x3' in mn: self.data=E(1)
        elif mn.startswith('buffer_inv') or mn.startswith('buffer_wbl2'):
            self.cls='vmem'
        elif mn.startswith('s_'):
            self.cls='salu'
            if mn=='s_nop': self.ws=int(ops[0],0)+1
            elif mn.startswith('s_cbranch') or mn=='s_branch':
                self.cls='branch'; self.target=ops[0]
                if 'vcc' in mn: self.r={'vcc'}
            elif mn in ('s_waitcnt','s_barrier','s_endpgm','s_setprio','s_sleep'): pass
            elif mn.startswith('s_cmp') or mn.startswith('s_bitcmp'): self.r=allr(0)
            elif 'saveexec' in mn: self.w=E(0)|{'exec'}; self.r=allr(1)|{'exec'}
            else:
                self.w=E(0); self.r=allr(1)
                if mn in('s_addk_i32','s_mulk_i32','s_bitset1_b32'): self.r|=E(0)
        else:
            raise ValueError('unknown instruction: '+text)
    @property
    def is_valu(self): return self.cls in ('valu','trans','dot','permlane','readlane')
    @property
    def is_dpp(self): return self.mn.endswith('_dpp')

def need(P, C):
    n=0
    vw={x for x in P.w if x[0] in 'va' and x!='vcc'}
    sw={x for x in P.w if x[0]=='s' or x=='vcc'}
    if P.is_valu:
        if C.cls=='mfma' and vw & C.r: n=max(n,2)
        if C.cls in('vmem','vmem_lds') and sw & C.r: n=max(n,5)
        if C.is_valu and sw & C.r: n=max(n,4 if C.cls=='readlane' else 2)
        if C.cls=='readlane' and vw & C.r: n=max(n,1)
        if P.cls=='trans' and vw & C.r and C.cls!='trans': n=max(n,1)
        if (C.is_dpp or C.cls=='permlane') and vw & C.r: n=max(n,2)
        if P.cls=='dot':
            if C.cls=='dot' and C.mn==P.mn:
                if vw & C.ab: n=max(n,3)
            elif vw & (C.r|C.w): n=max(n,3)
        if 'exec' in P.w:
            if C.is_dpp: n=max(n,5)
            if C.cls in('mfma','readlane','permlane'): n=max(n,4)
        if C.cls in ('salu','branch') and sw & C.r: n=max(n,1)
    if P.cls=='mfma':
        big={4:8,8:12}[P.passes]; ov={4:6,8:10}[P.passes]; war={4:3,8:7}[P.passes]
        if C.cls=='mfma':
            if P.w & C.ab: n=max(n,big)
            if P.w & C.c and not (P.w==C.c and P.passes==C.passes): n=max(n,ov)
            if P.w & C.w and not (P.w==C.w and P.passes==C.passes): n=max(n,ov)
        elif P.w & (C.r|C.w): n=max(n,big)
        if C.is_valu and P.c & C.w: n=max(n,war)
    if P.cls=='salu' and 'm0' in P.w and C.cls=='vmem_lds': n=max(n,1)
    if P.data and (P.data & C.w): n=max(n,2 if C.is_valu else 1)
    return n

MAXD=14

class Asm:
    def __init__(self):
        self.items=[]
        self.uid=0
    def __call__(self, text):
        for line in text.strip().split('\n'):
            line=line.strip()
            if not line or line.startswith(';'): continue
            if line.endswith(':'): self.items.append(('l',line[:-1]))
            else: self.items.append(('i',Inst(line)))
    def label(self,name): self.items.append(('l',name))
    def raw(self,text): self.items.append(('r',text))
    def newlabel(self,p='L'):
        self.uid+=1; return f'{p}_{self.uid}'
    def fix_hazards(self):
        nodes=[[k,x,None,None] for k,x in self.items]
        for p,q in zip(nodes,nodes[1:]):
            p[3]=q; q[2]=p
        src={}
        for n in nodes:
            if n[0]=='i' and n[1].target: src.setdefault(n[1].target,[]).append(n)
        head=nodes[0]; total=0
        changed=True
        while changed:
            changed=False
            n=head
            while n is not None:
                if n[0]=='i' and (n[1].r or n[1].w):
                    x=n[1]; worst=0
                    stack=[(n[2],0,False)]; seen={}
                    while stack:
                        j,d,viabranch=stack.pop()
                        while j is not None and d<MAXD:
                            if j[0]=='i' and j[1].mn in('s_branch','s_endpgm') and not viabranch: break
                            if seen.get(id(j),99)<=d: break
                            seen[id(j)]=d
                            if j[0]=='r': break
                            if j[0]=='l':
                                for sn in src.get(j[1],[]): stack.append((sn,d,True))
                                j=j[2]; viabranch=False
                                continue
                            y=j[1]
                            viabranch=False
                            nd=need(y,x)
                            if nd>d: worst=max(worst,nd-d)
                            d+=y.ws; j=j[2]
                    if worst>0:
                        nn=['i',Inst(f's_nop {worst-1}'),n[2],n]
                        if n[2] is not None: n[2][3]=nn
                        else: head=nn
                        n[2]=nn; total+=1; changed=True
                n=n[3]
        out=[]; n=head
        while n is not None:
            out.append((n[0],n[1])); n=n[3]
        self.items=out
        return total
    def text(self):
        o=[]
        for k,x in self.items:
            if k=='i': o.append('    '+x.text)
            elif k=='l': o.append(x+':')
            else: o.append(x)
        return '\n'.join(o)+'\n'

class Regs:
    def __init__(self, kind, start=0, limit=256):
        self.kind=kind; self.n=start; self.limit=limit; self.hi=start
    def get(self, cnt=1, align=None):
        if align is None: align = 1 if cnt==1 else (2 if (cnt==2 or self.kind=='v') else 4)
        self.n=(self.n+align-1)//align*align
        b=self.n; self.n+=cnt; self.hi=max(self.hi,self.n)
        assert self.n<=self.limit, f'out of {self.kind} regs'
        return b
    def mark(self): return self.n
    def reset(self,m): self.n=m

def v(b,n=1): return f'v{b}' if n==1 else f'v[{b}:{b+n-1}]'
def s(b,n=1): return f's{b}' if n==1 else f's[{b}:{b+n-1}]'
def a(b,n=1): return f'a{b}' if n==1 else f'a[{b}:{b+n-1}]'
import struct
def f2u(x): return struct.unpack('<I',struct.pack('<f',x))[0]
def fhex(x): return '0x%08x'%f2u(x)
```

```python
from asmlib import *
NAME='parallel_sum__linear_attn_block__mixer_gmlp__prompt'
QZ_OFF=0x0000000; QZ_SZ=64*94*1024
Z2_OFF=0x0700000; Z2_SZ=54*64*1024
NPART=7
ST_OFF=0x0B00000; ST_SZ=16*NPART*1024
ZP_OFF=0x0B20000; ZP_SZ=16*640*4
KVP_OFF=0x0C00000; KVP_SZ=16*8*15*1024
A3_OFF=0x0E00000; A3_SZ=128*47*1024
B3_OFF=0x1400000; B3_SZ=8*47*5*1024
BIG=0x40000000
LOG2E=1.4426950408889634
P_X,P_WQKV,P_WO,P_WIN,P_WSP,P_BSP,P_WOUT,P_OUT,P_DBG,P_WS=4,6,8,12,14,16,18,20,22,24

def load_kernargs(A):
    A('''s_load_dwordx16 s[4:19], s[0:1], 0
    s_load_dwordx4 s[20:23], s[0:1], 64
    s_load_dwordx2 s[24:25], s[0:1], 80''')

def srd(A, d, ptr, size, off=0):
    if off:
        A(f's_add_u32 s{d}, s{ptr}, 0x{off:x}')
        A(f's_addc_u32 s{d+1}, s{ptr+1}, 0')
    else:
        A(f's_mov_b32 s{d}, s{ptr}')
        A(f's_mov_b32 s{d+1}, s{ptr+1}')
    A(f's_mov_b32 s{d+2}, 0x{size:x}')
    A(f's_mov_b32 s{d+3}, 0x20000')

def rbf(A, r):
    A(f'v_cvt_pk_bf16_f32 v{r}, v{r}, v{r}')
    A(f'v_and_b32 v{r}, 0xffff0000, v{r}')

def ln_stats(A, vsum, vsq, n, vt):
    A(f'v_mul_f32 v{vsum}, {fhex(1.0/n)}, v{vsum}')
    A(f'v_mul_f32 v{vsq}, {fhex(1.0/n)}, v{vsq}')
    A(f'v_fma_f32 v{vsq}, -v{vsum}, v{vsum}, v{vsq}')
    A(f'v_max_f32 v{vsq}, 0, v{vsq}')
    rbf(A, vsum)
    rbf(A, vsq)
    A(f'v_add_f32 v{vsq}, {fhex(1e-5)}, v{vsq}')
    rbf(A, vsq)
    A(f'v_sqrt_f32 v{vsq}, v{vsq}')
    rbf(A, vsq)
    A(f'v_rcp_f32 v{vsq}, v{vsq}')

def descriptor(name, nv, ns=102):
    acc=(nv+3)//4*4
    return f'''.section .rodata,"a"
.p2align 6
.amdhsa_kernel {name}
  .amdhsa_next_free_vgpr {nv}
  .amdhsa_next_free_sgpr {ns}
  .amdhsa_accum_offset {acc}
  .amdhsa_group_segment_fixed_size 0
  .amdhsa_kernarg_size 88
  .amdhsa_user_sgpr_count 2
  .amdhsa_user_sgpr_kernarg_segment_ptr 1
  .amdhsa_system_sgpr_workgroup_id_x 1
.end_amdhsa_kernel
'''

import os
PROF=int(os.environ.get('PROF','0'))
PROF_OFF=0x2000000
class Prof:
    def __init__(self,A,kidx): self.A=A; self.n=0; self.kidx=kidx
    def stamp(self,k):
        if not PROF: return
        self.A(f's_memtime s[{86+2*k}:{87+2*k}]\ns_waitcnt lgkmcnt(0)')
    def init(self):
        if not PROF: return
        for k in range(8): self.A(f's_mov_b64 s[{86+2*k}:{87+2*k}], 0')
        self.A('s_memrealtime s[98:99]')
    def fin(self, sW):
        if not PROF: return
        A=self.A
        A('s_waitcnt vmcnt(0)')
        A('s_memtime s[100:101]\ns_waitcnt lgkmcnt(0)')
        srd(A,4,P_WS,0x40000,PROF_OFF+self.kidx*0x40000)
        A(f's_lshl_b32 s8, s2, 3\ns_add_u32 s8, s8, s{sW}\ns_lshl_b32 s8, s8, 6\nv_mov_b32 v1, 0\ns_mov_b64 exec, 1')
        for k in range(8):
            A(f'v_mov_b32 v2, s{86+2*k}\nbuffer_store_dword v2, v1, s[4:7], s8 offen offset:{4*k}')
        A('s_getreg_b32 s9, hwreg(HW_REG_XCC_ID)\nv_mov_b32 v2, s9\nbuffer_store_dword v2, v1, s[4:7], s8 offen offset:40')
        A('s_getreg_b32 s9, hwreg(HW_REG_HW_ID)\nv_mov_b32 v2, s9\nbuffer_store_dword v2, v1, s[4:7], s8 offen offset:44')
        A('s_memrealtime s[10:11]\ns_waitcnt lgkmcnt(0)\nv_mov_b32 v2, s10\nbuffer_store_dword v2, v1, s[4:7], s8 offen offset:48')
```

```python
from common import *

K1_LDS = 147456+256
K1_BLOCK = 768
ABASE = 0
BBASE = 49152
RP=0; CP=8192; RT=16384; MT=16896; CS=17408; KVX=20480; ZS=20480

G_=int(os.environ.get('ROTG','2'))
ROTK={1:1,2:1,3:1,5:2,10:2}[G_]
ROTT=sum(((n%G_)*10//G_)<<(4*n) for n in range(16))
def k1(name):
    A=Asm()
    S=Regs('s',26,86); V=Regs('v',1,168)
    A.raw(f'.p2align 8\n.globl {name}\n.type {name},@function')
    A.label(name)
    A(f's_cmp_ge_u32 s2, 256\ns_cbranch_scc1 {name}_end')
    P=Prof(A,0); P.init(); P.stamp(0)
    load_kernargs(A)
    sX=S.get(4,4); sB=S.get(4,4); sO=S.get(4,4); sO2=S.get(4,4)
    sW=S.get(); sNi=S.get(); sMi=S.get(); sRB=S.get(); sC=S.get(); sT0=S.get(); sT1=S.get(); sT2=S.get()
    sColB=S.get(); sUstr=S.get(); sNv=S.get(); sStride=S.get(); sWin=S.get()
    sBrd=S.get(); sAsl=S.get(); sBso=S.get(); sBstep=S.get()
    sM0B=S.get(); sM0A=S.get(); sIt=S.get(); sOnes=S.get()
    sK0=S.get(2,2); sK1=S.get(2,2)
    sPFo=S.get(); sPFi=S.get(); sSX=S.get(); sSXo=S.get(); sCnt=S.get(); sDA=S.get(); sDB=S.get(); sM1=S.get(2,2); sM2=S.get(2,2); sM3=S.get(2,2)
    vAc=V.get(); vBc=V.get(); vLane=V.get()
    ON=V.get(4,4)
    ST0=V.get(32,4)
    vRS=[ST0,ST0+4]; vRQ=[ST0+8,ST0+12]; vCSa=[ST0+16+4*k for k in range(4)]
    acc=V.get(64,4)
    FA=[[V.get(4,4) for _ in range(4)] for _ in range(2)]
    FB=[[V.get(4,4) for _ in range(4)] for _ in range(2)]
    F=FA[0][0]
    ACC=lambda rt,sl: acc+(rt*4+sl)*4
    t0,t1,t2,t3,t4,t5=[F+48+k for k in range(6)]
    vI=F+54; vG=F+55; vRow=F+56
    Lload=A.newlabel('k1load')
    Lz=A.newlabel('k1lz'); Ld=A.newlabel('k1ld'); L2=A.newlabel('k1l2'); L3=A.newlabel('k1l3'); Lz1=A.newlabel('k1lz1')
    A(f'''v_lshrrev_b32 v{t0}, 6, v0
    v_and_b32 v{vLane}, 63, v0
    v_readfirstlane_b32 s{sW}, v{t0}
    s_and_b32 s{sT0}, s2, 7
    s_lshr_b32 s{sT1}, s2, 3
    s_lshr_b32 s{sRB}, s{sT0}, 2
    s_lshl_b32 s{sRB}, s{sRB}, 3
    s_lshr_b32 s{sT2}, s{sT1}, 2
    s_add_u32 s{sRB}, s{sRB}, s{sT2}
    s_and_b32 s{sC}, s{sT0}, 3
    s_lshl_b32 s{sC}, s{sC}, 1
    s_and_b32 s{sT2}, s{sT1}, 1
    s_add_u32 s{sC}, s{sC}, s{sT2}
    s_and_b32 s{sT2}, s{sT1}, 2
    s_lshl_b32 s{sT2}, s{sT2}, 2
    s_add_u32 s{sC}, s{sC}, s{sT2}
    s_and_b32 s{sNi}, s{sW}, 3
    s_lshr_b32 s{sMi}, s{sW}, 2
    s_mov_b32 s{sUstr}, 32
    s_mov_b32 s{sNv}, 4
    s_mov_b32 s{sWin}, 0
    s_cmp_ge_u32 s{sC}, 8
    s_cbranch_scc1 {Lz}
    s_lshl_b32 s{sColB}, s{sC}, 7
    s_cmp_eq_u32 s{sNi}, 3
    s_cbranch_scc1 {Ld}
    s_mul_i32 s{sColB}, s{sC}, 160
    s_cmp_eq_u32 s{sNi}, 2
    s_cbranch_scc1 {L2}
    s_mul_i32 s{sT0}, s{sNi}, 1280
    s_add_u32 s{sColB}, s{sColB}, s{sT0}
    s_add_u32 s{sColB}, s{sColB}, 1280
    s_branch {Ld}
    {L2}:
    s_add_u32 s{sColB}, s{sColB}, 1408
    s_mov_b32 s{sUstr}, 1280
    s_mov_b32 s{sNv}, 2
    s_branch {Ld}
    {Lz}:
    s_sub_u32 s{sT0}, s{sC}, 8
    s_lshl_b32 s{sT0}, s{sT0}, 1
    s_add_u32 s{sT0}, s{sT0}, s{sNi}
    s_mov_b32 s{sWin}, 1
    s_cmp_ge_u32 s{sNi}, 2
    s_cbranch_scc1 {Lz1}
    s_add_u32 s{sT0}, s{sT0}, 13
    s_lshl_b32 s{sColB}, s{sT0}, 7
    s_cmp_eq_u32 s{sC}, 15
    s_cselect_b32 s{sNv}, 0, 4
    s_branch {Ld}
    {Lz1}:
    s_sub_u32 s{sT0}, s{sT0}, 4
    s_lshl_b32 s{sColB}, s{sT0}, 7
    s_cmp_lg_u32 s{sC}, 8
    s_cbranch_scc1 {Ld}
    s_mov_b32 s{sWin}, 0
    s_add_u32 s{sT0}, s{sNi}, 6
    s_lshl_b32 s{sColB}, s{sT0}, 7
    {Ld}:
    s_cmp_eq_u32 s{sWin}, 1
    s_movk_i32 s{sStride}, 3840
    s_cselect_b32 s{sStride}, 3456, s{sStride}
    s_cmp_eq_u32 s{sMi}, 2
    s_cbranch_scc1 {Lload}''')
    def lanevars():
        A(f'''v_and_b32 v{vI}, 15, v0
        v_bfe_u32 v{vG}, v0, 4, 2
        v_lshrrev_b32 v{t0}, 2, v{vI}
        v_and_b32 v{t1}, 3, v{vI}
        v_lshl_add_u32 v{t0}, v{t0}, 3, v{t1}
        s_lshl_b32 s{sT0}, s{sMi}, 6
        v_add_u32 v{vRow}, s{sT0}, v{t0}''')
    lanevars()
    A(f'''s_mov_b32 s{sOnes}, 0x3f803f80
    v_lshlrev_b32 v{t0}, 7, v{vRow}
    v_lshrrev_b32 v{t1}, 1, v{vI}
    v_xor_b32 v{t1}, v{t1}, v{vG}
    v_lshl_add_u32 v{vAc}, v{t1}, 4, v{t0}
    v_bfe_u32 v{t0}, v{vLane}, 2, 2
    v_lshlrev_b32 v{t1}, 10, v{vG}
    v_lshl_add_u32 v{t1}, v{t0}, 7, v{t1}
    v_and_b32 v{t2}, 3, v{vLane}
    v_lshl_add_u32 v{t1}, v{t2}, 3, v{t1}
    v_add_u32 v{t1}, {BBASE}, v{t1}
    v_bfe_u32 v{t2}, v{vLane}, 3, 2
    v_xor_b32 v{t2}, s{sNi}, v{t2}
    v_lshl_add_u32 v{vBc}, v{t2}, 5, v{t1}
    s_mov_b32 s{sBrd}, 1
    s_mov_b32 s{sAsl}, 0
    s_mov_b32 s{sIt}, 0''')
    for r in range(64): A(f'v_mov_b32 v{acc+r}, 0')
    for r in range(32): A(f'v_mov_b32 v{ST0+r}, 0')
    for r in range(4): A(f'v_mov_b32 v{ON+r}, s{sOnes}')
    def reads(setn, aaddr, baddr):
        L=[]
        for k in range(4):
            L.append(f'ds_read_b128 {v(FA[setn][k],4)}, v{aaddr} offset:{(k&1)*512+(k>>1)*4096}')
            L.append(f'ds_read_b64_tr_b16 {v(FB[setn][k],2)}, v{baddr} offset:{k*4096}')
            L.append(f'ds_read_b64_tr_b16 {v(FB[setn][k]+2,2)}, v{baddr} offset:{k*4096+512}')
        return L
    A(f'''s_lshr_b32 s{sT0}, s{sNi}, 1
    s_xor_b32 s{sT0}, s{sT0}, s{sMi}
    s_lshl_b32 s{sT0}, s{sT0}, 1
    s_and_b32 s{sT1}, s{sNi}, 1
    s_add_u32 s{sT0}, s{sT0}, s{sT1}
    s_lshr_b32 s{sT1}, s{sC}, 3
    s_lshl_b32 s{sT1}, s{sT1}, 2
    s_add_u32 s{sT0}, s{sT0}, s{sT1}
    s_waitcnt lgkmcnt(0)''')
    srd(A,sO2,P_WS,ST_SZ,ST_OFF)
    srd(A,sB,P_DBG,256)
    Linv=A.newlabel('k1inv')
    A(f'''s_mul_i32 s{sSX}, s{sRB}, {NPART}
    s_lshl_b32 s{sSX}, s{sSX}, 10
    s_sub_u32 s{sT1}, s{sC}, 8
    s_lshl_b32 s{sSXo}, s{sT1}, 10
    s_add_u32 s{sSXo}, s{sSXo}, s{sSX}
    s_lshl_b32 s{sCnt}, s{sRB}, 2
    s_cmp_lg_u32 s{sW}, 0
    s_cbranch_scc1 {Linv}
    s_cmp_ge_u32 s{sT1}, {NPART}
    s_cbranch_scc1 {Linv}
    v_mov_b32 v{F}, -1
    v_mov_b32 v{F+1}, -1
    v_mov_b32 v{F+2}, -1
    v_mov_b32 v{F+3}, -1
    v_lshlrev_b32 v{F+4}, 4, v{vLane}
    v_mov_b32 v{F+5}, 0
    v_mov_b32 v{F+6}, 1
    buffer_store_dwordx4 {v(F,4)}, v{F+4}, {s(sO2,4)}, s{sSXo} offen sc0 sc1
    s_waitcnt vmcnt(0)
    s_mov_b64 exec, 1
    buffer_atomic_add v{F+6}, v{F+5}, {s(sB,4)}, s{sCnt} offen sc1
    s_mov_b64 exec, -1
    {Linv}:
    ''')
    A(f's_mov_b32 m0, 147456')
    if os.environ.get('P2'):
        Lq1=A.newlabel('k1pf'); Lq2=A.newlabel('k1pf')
        A(f'''s_cmp_eq_u32 s{sWin}, 1
        s_cselect_b32 s{sB}, s{P_WIN}, s{P_WQKV}
        s_cselect_b32 s{sB+1}, s{P_WIN+1}, s{P_WQKV+1}
        s_mul_i32 s{sB+2}, s{sStride}, 640
        s_mov_b32 s{sB+3}, 0x20000
        s_and_b32 s{sT1}, s{sRB}, 7
        s_add_u32 s{sT1}, s{sT1}, 128
        v_lshl_add_u32 v{F+8}, v{vLane}, 3, s{sT1}
        v_mul_lo_u32 v{F+8}, v{F+8}, s{sStride}
        s_lshl_b32 s{sT1}, s{sMi}, 7
        s_add_u32 s{sT1}, s{sT1}, s{sColB}
        s_cmp_lg_u32 s{sNv}, 4
        s_cbranch_scc1 {Lq1}
        s_cmp_eq_u32 s{sMi}, 0
        s_cbranch_scc1 {Lq2}
        s_cmp_ge_u32 s{sC}, 8
        s_cbranch_scc1 {Lq1}
        s_cmp_ge_u32 s{sNi}, 2
        s_cbranch_scc1 {Lq1}
        {Lq2}:
        buffer_load_dword v{F+8}, {s(sB,4)}, s{sT1} offen lds
        {Lq1}:''')
        Lq3=A.newlabel('k1pf')
        srd(A,sX,P_X,2048*1280)
        A(f'''s_cmp_eq_u32 s{sMi}, 0
        s_cbranch_scc1 {Lq3}
        s_lshr_b32 s{sT1}, s{sRB}, 3
        s_lshl_b32 s{sT1}, s{sT1}, 10
        s_lshr_b32 s{sT2}, s2, 3
        s_lshl_b32 s{sT2}, s{sT2}, 5
        s_add_u32 s{sT1}, s{sT1}, s{sT2}
        v_and_b32 v{F+8}, 31, v{vLane}
        v_add_u32 v{F+8}, s{sT1}, v{F+8}
        v_mul_u32_u24 v{F+8}, 1280, v{F+8}
        v_lshrrev_b32 v{F+9}, 5, v{vLane}
        v_lshl_add_u32 v{F+8}, v{F+9}, 7, v{F+8}
        s_lshl_b32 s{sT1}, s{sNi}, 8
        s_add_u32 s{sT1}, s{sT1}, 256
        buffer_load_dword v{F+8}, {s(sX,4)}, s{sT1} offen lds
        {Lq3}:''')
    Lq4=A.newlabel('k1pf'); Lq5=A.newlabel('k1pf')
    srd(A,sX,P_WSP,2048*4096)
    A(f'''s_and_b32 s{sT1}, s2, 7
    s_lshl_b32 s{sT1}, s{sT1}, 5
    s_lshr_b32 s{sT2}, s2, 3
    s_add_u32 s{sT1}, s{sT1}, s{sT2}
    s_lshl_b32 s{sT1}, s{sT1}, 2
    s_add_u32 s{sT1}, s{sT1}, s{sW}
    s_lshl_b32 s{sPFo}, s{sT1}, 13
    s_mov_b32 s{sPFi}, {int(os.environ.get('PF0','6'))}
    s_cmp_lt_u32 s{sW}, 4
    s_cbranch_scc1 {Lq4}
    s_lshl_b32 s{sPFo}, s2, 13
    s_mov_b32 s{sX}, s{P_WO}
    s_mov_b32 s{sX+1}, s{P_WO+1}
    s_mov_b32 s{sX+2}, {640*1280}
    s_cmp_lt_u32 s2, 100
    s_cbranch_scc1 {Lq5}
    s_sub_u32 s{sPFo}, s{sPFo}, {100*8192}
    s_mov_b32 s{sX}, s{P_WOUT}
    s_mov_b32 s{sX+1}, s{P_WOUT+1}
    s_mov_b32 s{sX+2}, {864*1280}
    s_cmp_ge_u32 s2, 235
    s_cselect_b32 s{sPFi}, 99, s{sPFi}
    {Lq5}:
    s_cmp_lg_u32 s{sW}, 4
    s_cselect_b32 s{sPFi}, 99, s{sPFi}
    {Lq4}:''')
    if os.environ.get('NOP1'): A(f's_mov_b32 s{sPFi}, 99')
    srd(A,sB,P_DBG,256)
    A(f'''v_lshlrev_b32 v{vLane}, 7, v{vLane}''')
    P.stamp(1)
    A('s_barrier')
    P.stamp(2)
    for l in reads(0,vAc,vBc): A(l)
    A(f'v_xor_b32 v{vAc}, 64, v{vAc}\nv_add_u32 v{vBc}, 16384, v{vBc}')
    Lv=[A.newlabel('k1v') for _ in range(8)]; Lepi=A.newlabel('k1epi')
    for k in range(1,8): A(f's_cmp_eq_u32 s{sT0}, {k}\ns_cbranch_scc1 {Lv[k]}')
    def mainloop(nS,beta,blk):
        Ltop=A.newlabel('k1loop')
        A.label(Ltop)
        for par in range(2):
            cur=par; nxt=par^1
            A('s_waitcnt lgkmcnt(0)\ns_barrier')
            R=reads(nxt,vAc,vBc)
            M=[]
            for rt in range(4):
                for k in range(4):
                    a_,b_=v(FA[cur][rt],4),v(FB[cur][k],4)
                    if k>=nS: a_,b_=b_,a_
                    M.append(f'v_mfma_f32_16x16x32_bf16 {v(ACC(rt,k),4)}, {a_}, {b_}, {v(ACC(rt,k),4)}')
            mf=lambda d,a_,b_: f'v_mfma_f32_16x16x32_bf16 {v(d,4)}, {v(a_,4)}, {v(b_,4)}, {v(d,4)}'
            if os.environ.get('NOSTAT'): pass
            elif par==beta:
                for tt in range(2):
                    f=FA[cur][2*blk+tt]
                    M.append(mf(vRS[tt],ON,f)); M.append(mf(vRQ[tt],f,f))
            else:
                for k in range(4): M.append(mf(vCSa[k],ON,FB[cur][k]))
            X=[f's_add_u32 s{sBrd}, s{sBrd}, 1', f's_cmp_eq_u32 s{sBrd}, 6', f's_cselect_b32 s{sBrd}, 0, s{sBrd}', f's_movk_i32 s{sDB}, 0x4000', f's_cselect_b32 s{sDB}, {(-81920)&0xffffffff}, s{sDB}']
            if par==0:
                X+=[f's_add_u32 s{sAsl}, s{sAsl}, 1', f's_cmp_eq_u32 s{sAsl}, 3', f's_cselect_b32 s{sAsl}, 0, s{sAsl}', f's_movk_i32 s{sDA}, 0x4000', f's_cselect_b32 s{sDA}, {(-32768)&0xffffffff}, s{sDA}']
            for idx in range(len(M)):
                A(M[idx])
                if idx<12: A(R[idx])
                if idx==12:
                    for x in X: A(x)
                if idx==13:
                    if par==0: A(f'v_xad_u32 v{vAc}, v{vAc}, 64, s{sDA}')
                    else: A(f'v_xor_b32 v{vAc}, 64, v{vAc}')
                if idx==14: A(f'v_add_u32 v{vBc}, s{sDB}, v{vBc}')
        lp=A.newlabel('k1pf')
        A(f's_cmp_lg_u32 s{sIt}, s{sPFi}\ns_cbranch_scc1 {lp}\nbuffer_load_dword v{vLane}, {s(sX,4)}, s{sPFo} offen lds\n{lp}:')
        A(f's_add_u32 s{sIt}, s{sIt}, 1\ns_cmp_lt_u32 s{sIt}, 10\ns_cbranch_scc1 {Ltop}')
    for k in range(8):
        A.label(Lv[k])
        mainloop(3 if k<4 else 2,(k>>1)&1,k&1)
        if k<7: A(f's_branch {Lepi}')
    A.label(Lepi)
    P.stamp(3)
    A(f'v_and_b32 v{vLane}, 63, v0')
    lanevars()
    A(f'''s_and_b32 s{sT0}, s{sNi}, 1
    s_lshl_b32 s{sT0}, s{sT0}, 7
    s_lshr_b32 s{sT1}, s{sNi}, 1
    s_lshl_b32 s{sT1}, s{sT1}, 10
    s_add_u32 s{sT0}, s{sT0}, s{sT1}
    v_lshl_add_u32 v{t0}, v{vRow}, 2, s{sT0}
    s_lshl_b32 s{sT0}, s{sMi}, 10
    s_lshl_b32 s{sT1}, s{sNi}, 8
    s_add_u32 s{sT0}, s{sT0}, s{sT1}
    v_lshl_add_u32 v{t1}, v{vI}, 2, s{sT0}
    s_mov_b32 s{sM1}, 0x22222222
    s_mov_b32 s{sM1+1}, 0x22222222
    s_mov_b32 s{sM2}, 0x44444444
    s_mov_b32 s{sM2+1}, 0x44444444
    s_mov_b32 s{sM3}, 0x88888888
    s_mov_b32 s{sM3+1}, 0x88888888
    s_mov_b32 exec_lo, 0x00f0000f
    s_mov_b32 exec_hi, 0xf0000f00''')
    for tt in range(2):
        for r,m in ((1,sM1),(2,sM2),(3,sM3)):
            A(f'v_cndmask_b32 v{vRQ[tt]}, v{vRQ[tt]}, v{vRQ[tt]+r}, {s(m,2)}')
    for k in range(4): A(f'ds_write_b32 v{t1}, v{vCSa[k]} offset:{CP+64*k}')
    A(f'''ds_write_b32 v{t0}, v{vRS[0]} offset:{RP}
    ds_write_b32 v{t0}, v{vRS[1]} offset:{RP+16}
    ds_write_b32 v{t0}, v{vRQ[0]} offset:{RP+512}
    ds_write_b32 v{t0}, v{vRQ[1]} offset:{RP+512+16}
    s_mov_b64 exec, -1''')
    srd(A,sO,P_WS,QZ_SZ,QZ_OFF)
    nI,nG,nRow,vL16=ST0+1,ST0+2,ST0+3,ST0+5
    vK=ST0+6
    A(f'''v_mov_b32 v{nI}, v{vI}
    v_mov_b32 v{nG}, v{vG}
    v_mov_b32 v{nRow}, v{vRow}
    v_lshlrev_b32 v{vL16}, 4, v{vLane}''')
    vI,vG,vRow=nI,nG,nRow
    t0,t1,t2,t3,t4,t5=ST0+9,ST0+10,ST0+11,ST0+13,ST0+14,ST0+15
    A('s_waitcnt lgkmcnt(0)\ns_barrier')
    Lc=A.newlabel('k1c'); Le=A.newlabel('k1e')
    A(f'''v_lshlrev_b32 v{t0}, 2, v0
    s_cmp_ge_u32 s{sW}, 2
    s_cbranch_scc1 {Lc}
    ds_read2st64_b32 {v(F,2)}, v{t0} offset0:0 offset1:4
    ds_read2st64_b32 {v(F+2,2)}, v{t0} offset0:2 offset1:6
    s_waitcnt lgkmcnt(0)
    v_add_f32 v{F}, v{F}, v{F+1}
    v_add_f32 v{F+4}, v{F+2}, v{F+3}''')
    ln_stats(A,F,F+4,640,t1)
    A(f'''ds_write_b32 v{t0}, v{F+4} offset:{RT}
    ds_write_b32 v{t0}, v{F} offset:{MT}
    s_branch {Le}
    {Lc}:
    s_cmp_ge_u32 s{sW}, 6
    s_cbranch_scc1 {Le}
    ds_read2st64_b32 {v(F,2)}, v{t0} offset0:{(CP-512)//256} offset1:{(CP-512)//256+4}
    s_waitcnt lgkmcnt(0)
    v_add_f32 v{F}, v{F}, v{F+1}
    ds_write_b32 v{t0}, v{F} offset:{CS-512}
    {Le}:''')
    A(f'''s_lshl_b32 s{sT0}, s{sMi}, 8
    v_lshlrev_b32 v{t0}, 5, v{vG}
    v_add_u32 v{t0}, s{sT0}, v{t0}
    s_lshl_b32 s{sT0}, s{sNi}, 8
    v_lshlrev_b32 v{t1}, 2, v{vI}
    v_add_u32 v{t1}, s{sT0}, v{t1}
    v_lshlrev_b32 v{t2}, 2, v{vRow}
    v_lshlrev_b32 v{t3}, 4, v{vG}
    v_add_u32 v{t3}, s{sT0}, v{t3}
    s_waitcnt lgkmcnt(0)
    s_barrier''')
    P.stamp(4)
    GC0=-2*0.7978845608028654*LOG2E; GC1=GC0*0.044715
    R_=F; M_=F+16; C_=F+32; RW=F+36; MW=F+40; CW=F+44; PK=F+56; TMP=F+44
    def wtabs():
        for rt in range(4):
            o=(rt>>1)*128+(rt&1)*16
            A(f'ds_read_b32 v{MW+rt}, v{t2} offset:{MT+o}')
            A(f'ds_read_b32 v{RW+rt}, v{t2} offset:{RT+o}')
        for k in (3,2): A(f'ds_read_b128 {v(CW+4*(k-2),4)}, v{t3} offset:{CS+64*k}')
    def stabs(mt,rt_,cs=True):
        if cs:
            for k in range(3): A(f'ds_read_b32 v{C_+k}, v{t1} offset:{CS+64*k}')
        for rt in range(4):
            o=(rt>>1)*128+(rt&1)*16
            A(f'ds_read_b128 {v(M_+4*rt,4)}, v{t0} offset:{mt+o}')
            A(f'ds_read_b128 {v(R_+4*rt,4)}, v{t0} offset:{rt_+o}')
    SEL3=lambda odd: 'op_sel:[0,1,0] op_sel_hi:[1,1,1]' if odd else 'op_sel:[0,0,0] op_sel_hi:[1,0,1]'
    SEL2=lambda odd: 'op_sel:[0,1] op_sel_hi:[1,1]' if odd else 'op_sel:[0,0] op_sel_hi:[1,0]'
    def lnS(rt,k,addeps):
        for h in range(2):
            x=ACC(rt,k)+2*h
            A(f'v_pk_fma_f32 {v(x,2)}, {v(M_+4*rt+2*h,2)}, {v(C_+(k&2),2)}, {v(x,2)} {SEL3(k&1)} neg_lo:[1,0,0] neg_hi:[1,0,0]')
        for h in range(2):
            x=ACC(rt,k)+2*h
            if addeps: A(f'v_pk_fma_f32 {v(x,2)}, {v(x,2)}, {v(R_+4*rt+2*h,2)}, {s(sK1,2)}')
            else: A(f'v_pk_mul_f32 {v(x,2)}, {v(x,2)}, {v(R_+4*rt+2*h,2)}')
    def lnW(rt,k):
        for h in range(2):
            x=ACC(rt,k)+2*h
            A(f'v_pk_fma_f32 {v(x,2)}, {v(CW+4*(k-2)+2*h,2)}, {v(MW+(rt&2),2)}, {v(x,2)} {SEL3(rt&1)} neg_lo:[1,0,0] neg_hi:[1,0,0]')
        for h in range(2):
            x=ACC(rt,k)+2*h
            A(f'v_pk_mul_f32 {v(x,2)}, {v(x,2)}, {v(RW+(rt&2),2)} {SEL2(rt&1)}')
    def phi(x, tmp):
        for h in range(2): A(f'v_pk_mul_f32 {v(tmp+2*h,2)}, {v(x+2*h,2)}, {s(sK0,2)}')
        for r in range(4): A(f'v_exp_f32_e64 v{tmp+r}, v{tmp+r} clamp')
        for r in range(4): A(f'v_max_f32 v{x+r}, s{sK1}, v{x+r}')
        for h in range(2): A(f'v_pk_add_f32 {v(x+2*h,2)}, {v(x+2*h,2)}, {v(tmp+2*h,2)}')
    def gelu(x, tmp):
        for h in range(2): A(f'v_pk_mul_f32 {v(tmp+2*h,2)}, {v(x+2*h,2)}, {v(x+2*h,2)}')
        for h in range(2): A(f'v_pk_fma_f32 {v(tmp+2*h,2)}, {v(tmp+2*h,2)}, {s(sK1,2)}, {v(vK,2)}')
        for h in range(2): A(f'v_pk_mul_f32 {v(tmp+2*h,2)}, {v(tmp+2*h,2)}, {v(x+2*h,2)}')
        for r in range(4): A(f'v_exp_f32 v{tmp+r}, v{tmp+r}')
        for h in range(2): A(f'v_pk_add_f32 {v(tmp+2*h,2)}, {v(tmp+2*h,2)}, 1.0 op_sel_hi:[1,0]')
        for r in range(4): A(f'v_rcp_f32 v{tmp+r}, v{tmp+r}')
        for h in range(2): A(f'v_pk_mul_f32 {v(x+2*h,2)}, {v(x+2*h,2)}, {v(tmp+2*h,2)}')
    def pack(d,x):
        A(f'v_cvt_pk_bf16_f32 v{d}, v{x}, v{x+1}\nv_cvt_pk_bf16_f32 v{d+1}, v{x+2}, v{x+3}')
    def wslot(k,so0,so1):
        for blk in range(2):
            p=PK+4*blk
            for tt in range(2):
                lnW(2*blk+tt,k); pack(p+2*tt,ACC(2*blk+tt,k))
            A(f'buffer_store_dwordx4 {v(p,4)}, v{vL16}, {s(sO,4)}, s{so0 if blk==0 else so1} offen')
    LZ=A.newlabel('k1ez')
    A(f'''s_lshl_b32 s{sT0}, s{sRB}, 2
    s_lshl_b32 s{sT1}, s{sMi}, 1
    s_add_u32 s{sT0}, s{sT0}, s{sT1}
    s_mul_i32 s{sT0}, s{sT0}, 94
    s_add_u32 s{sT0}, s{sT0}, s{sNi}
    s_cmp_ge_u32 s{sC}, 8
    s_cbranch_scc1 {LZ}''')
    wtabs()
    A('s_waitcnt lgkmcnt(0)')
    stabs(MT,RT)
    A(f'''s_lshl_b32 s{sT1}, s{sC}, 2
    s_add_u32 s{sT0}, s{sT0}, s{sT1}
    s_lshl_b32 s{sT0}, s{sT0}, 10
    s_add_u32 s{sT1}, s{sT0}, {94*1024}
    s_mov_b32 s{sK0}, {fhex(LOG2E)}
    s_mov_b32 s{sK0+1}, {fhex(LOG2E)}
    s_mov_b32 s{sK1}, {fhex(1e-6)}
    s_mov_b32 s{sK1+1}, {fhex(1e-6)}''')
    wslot(3,sT0,sT1)
    A(f'''s_lshl_b32 s{sT0}, s{sNi}, 12
    s_lshl_b32 s{sT1}, s{sMi}, 11
    s_add_u32 s{sT0}, s{sT0}, s{sT1}
    v_add_u32 v{t0}, s{sT0}, v{vL16}
    s_and_b32 s{sT0}, s{sNi}, 1
    s_mul_i32 s{sT0}, s{sT0}, 6
    s_lshr_b32 s{sT2}, s{sNi}, 1
    s_add_u32 s{sT0}, s{sT0}, s{sT2}
    s_lshl_b32 s{sT0}, s{sT0}, 12
    s_add_u32 s{sT0}, s{sT0}, s{sT1}
    v_add_u32 v{t1}, s{sT0}, v{vL16}
    s_waitcnt lgkmcnt(0)''')
    def kvslot(k,dophi,addr,off):
        for blk in range(2):
            p=PK+4*blk
            for tt in range(2):
                rt=2*blk+tt
                lnS(rt,k,dophi)
                if dophi: phi(ACC(rt,k),TMP+4*tt)
                pack(p+2*tt,ACC(rt,k))
            A(f'ds_write_b128 v{addr}, {v(p,4)} offset:{KVX+off+blk*1024}')
    kvslot(1,False,t0,6*4096)
    kvslot(0,True,t0,0)
    Lk=A.newlabel('k1k'); Lk2=A.newlabel('k1k')
    A(f's_cmp_eq_u32 s{sNi}, 0\ns_cbranch_scc1 {Lk}')
    kvslot(2,False,t1,4*4096)
    A(f's_branch {Lk2}')
    A.label(Lk)
    kvslot(2,True,t1,4*4096)
    A.label(Lk2)
    srd(A,sO,P_WS,KVP_SZ,KVP_OFF)
    srd(A,sO2,P_WS,ZP_SZ,ZP_OFF)
    A(f'''s_waitcnt lgkmcnt(0)
    s_barrier
    s_cmp_eq_u32 s{sNi}, 0
    s_cbranch_scc1 {name}_fin
    s_cmp_eq_u32 s{sW}, 7
    s_cbranch_scc1 {name}_fin
    s_sub_u32 s{sT0}, s{sW}, s{sMi}
    s_sub_u32 s{sT0}, s{sT0}, 1
    s_lshl_b32 s{sT1}, s{sT0}, 12
    v_add_u32 v{t0}, s{sT1}, v{vL16}''')
    for b in range(4):
        A(f'ds_read_b128 {v(acc+4*b,4)}, v{t0} offset:{KVX+b*1024}')
        for jj in range(3):
            A(f'ds_read_b128 {v(F+(jj*4+b)*4,4)}, v{t0} offset:{KVX+(5+jj)*4096+b*1024}')
    D=acc+16
    A(f'''s_lshl_b32 s{sT1}, s{sRB}, 3
    s_add_u32 s{sT1}, s{sT1}, s{sC}
    s_mul_i32 s{sT1}, s{sT1}, 15
    s_mul_i32 s{sT2}, s{sT0}, 3
    s_add_u32 s{sT1}, s{sT1}, s{sT2}
    s_lshl_b32 s{sT1}, s{sT1}, 10
    s_mul_i32 s{sIt}, s{sRB}, 2560
    s_mul_i32 s{sT2}, s{sC}, 320
    s_add_u32 s{sIt}, s{sIt}, s{sT2}
    s_lshl_b32 s{sT2}, s{sT0}, 6
    s_add_u32 s{sIt}, s{sIt}, s{sT2}
    v_mov_b32 v{t2}, {BIG}
    v_cmp_eq_u32 vcc, 0, v{vI}
    v_cndmask_b32 v{t1}, v{t2}, v{vLane}, vcc''')
    for b in range(4):
        A(f's_waitcnt lgkmcnt({12-4*b})')
        for jj in range(3):
            A(f'v_mfma_f32_16x16x32_bf16 {v(D+4*jj,4)}, {v(acc+4*b,4)}, {v(F+(jj*4+b)*4,4)}, {v(D+4*jj,4) if b else 0}')
        A(f'v_mfma_f32_16x16x32_bf16 {v(D+12,4)}, {v(acc+4*b,4)}, {v(ON,4)}, {v(D+12,4) if b else 0}')
    for jj in range(3):
        A(f'buffer_store_dwordx4 {v(D+4*jj,4)}, v{vL16}, {s(sO,4)}, s{sT1} offen offset:{1024*jj}')
    A(f'''buffer_store_dwordx4 {v(D+12,4)}, v{t1}, {s(sO2,4)}, s{sIt} offen
    s_branch {name}_fin''')
    A.label(LZ)
    sQ0,sQ1,sZ0,sZ1,sV=sColB,sUstr,sNv,sStride,sWin
    RT2=ZS+4096; MT2=ZS+4608
    Lw=A.newlabel('k1w')
    stabs(MT,RT)
    A(f'''s_lshl_b32 s{sT1}, s{sC}, 3
    s_add_u32 s{sT0}, s{sT0}, s{sT1}
    s_sub_u32 s{sT0}, s{sT0}, 32
    s_lshl_b32 s{sQ0}, s{sT0}, 10
    s_add_u32 s{sQ1}, s{sQ0}, {94*1024}
    s_mov_b32 s{sK1}, {fhex(GC1)}
    s_mov_b32 s{sK1+1}, {fhex(GC1)}
    v_mov_b32 v{vK}, {fhex(GC0)}
    v_mov_b32 v{vK+1}, {fhex(GC0)}
    s_lshl_b32 s{sV}, s{sC}, 2
    s_add_u32 s{sV}, s{sV}, s{sNi}
    s_cmp_eq_u32 s{sC}, 15
    s_cbranch_scc1 {Lw}
    v_mov_b32 v{t5}, 0
    buffer_load_dword v{t4}, v{t5}, {s(sB,4)}, s{sCnt} offen sc1
    s_lshl_b32 s{sT0}, s{sC}, 3
    s_add_u32 s{sT0}, s{sT0}, s{sNi}
    s_sub_u32 s{sT0}, s{sT0}, 66
    s_lshl_b32 s{sT0}, s{sT0}, 16
    s_lshl_b32 s{sT1}, s{sRB}, 12
    s_add_u32 s{sT0}, s{sT0}, s{sT1}
    s_lshl_b32 s{sT1}, s{sMi}, 11
    s_add_u32 s{sZ0}, s{sT0}, s{sT1}
    s_add_u32 s{sZ1}, s{sZ0}, {4*65536}
    s_waitcnt lgkmcnt(0)''')
    ZT=F+36; a_=lambda i: ST0+16+i; q_=lambda i: F+44+i
    Lz0=A.newlabel('k1z0'); Lz1=A.newlabel('k1z1')
    for rt in range(4):
        x=ACC(rt,1); lnS(rt,1,False); gelu(x,ZT+4*(rt&1))
        for h in range(2): A(f'v_pk_mul_f32 {v(q_(4*rt+2*h),2)}, {v(x+2*h,2)}, {v(x+2*h,2)}')
    A(f's_cmp_lt_u32 s{sV}, 34\ns_cbranch_scc1 {Lz0}')
    for rt in range(4):
        x=ACC(rt,0); lnS(rt,0,False); gelu(x,ZT+4*(rt&1))
        for h in range(2):
            A(f'v_pk_add_f32 {v(a_(4*rt+2*h),2)}, {v(ACC(rt,1)+2*h,2)}, {v(x+2*h,2)}')
            A(f'v_pk_fma_f32 {v(q_(4*rt+2*h),2)}, {v(x+2*h,2)}, {v(x+2*h,2)}, {v(q_(4*rt+2*h),2)}')
    A(f's_branch {Lz1}')
    A.label(Lz0)
    for i in range(16): A(f'v_mov_b32 v{a_(i)}, v{ACC(i>>2,1)+(i&3)}')
    A.label(Lz1)
    for i in range(16): A(f'v_add_f32_dpp v{a_(i)}, v{a_(i)}, v{a_(i)} row_ror:8 row_mask:0xf bank_mask:0x3')
    for i in range(16): A(f'v_add_f32_dpp v{a_(i)}, v{q_(i)}, v{q_(i)} row_ror:8 row_mask:0xf bank_mask:0xc')
    for i in range(8): A(f'v_add_f32_dpp v{a_(i)}, v{a_(i)}, v{a_(i)} row_shl:4 row_mask:0xf bank_mask:0x5')
    for i in range(8): A(f'v_add_f32_dpp v{a_(i)}, v{a_(8+i)}, v{a_(8+i)} row_shr:4 row_mask:0xf bank_mask:0xa')
    for i in range(8): A(f'v_add_f32_dpp v{a_(i)}, v{a_(i)}, v{a_(i)} quad_perm:[1,0,3,2] row_mask:0xf bank_mask:0xf')
    for i in range(8): A(f'v_add_f32_dpp v{a_(i)}, v{a_(i)}, v{a_(i)} quad_perm:[2,3,0,1] row_mask:0xf bank_mask:0xf')
    u0,u1=F,F+1
    Lp=A.newlabel('k1p'); Lp1=A.newlabel('k1p'); Lp2=A.newlabel('k1p'); Lp3=A.newlabel('k1p'); Lpd=A.newlabel('k1p')
    A(f'''v_bfe_u32 v{u0}, v{vLane}, 3, 1
    v_lshlrev_b32 v{u0}, 9, v{u0}
    v_bfe_u32 v{u1}, v{vLane}, 2, 1
    v_lshl_add_u32 v{u0}, v{u1}, 7, v{u0}
    v_lshl_add_u32 v{u0}, v{vG}, 5, v{u0}
    s_lshl_b32 s{sT0}, s{sNi}, 10
    s_lshl_b32 s{sT1}, s{sMi}, 8
    s_add_u32 s{sT0}, s{sT0}, s{sT1}
    v_add_u32 v{u0}, s{sT0}, v{u0}
    ds_write_b128 v{u0}, {v(a_(0),4)} offset:{ZS}
    ds_write_b128 v{u0}, {v(a_(4),4)} offset:{ZS+16}
    s_waitcnt lgkmcnt(0)
    s_barrier
    s_cmp_ge_u32 s{sW}, 2
    s_cbranch_scc1 {Lw}
    v_lshlrev_b32 v{u0}, 2, v0''')
    for q in range(4): A(f'ds_read2st64_b32 {v(F+4+2*q,2)}, v{u0} offset0:{ZS//256+4*q} offset1:{ZS//256+4*q+2}')
    A(f'''v_lshlrev_b32 v{u1}, 3, v0
    s_mov_b32 s{sIt}, 0
    {Lp}:
    s_waitcnt vmcnt(0)
    v_readfirstlane_b32 s{sT0}, v{t4}
    s_add_u32 s{sIt}, s{sIt}, 1
    s_cmp_ge_u32 s{sT0}, {NPART}
    s_cbranch_scc1 {Lp1}
    s_cmp_ge_u32 s{sIt}, 0x40000
    s_cbranch_scc1 {Lp1}
    s_sleep 4
    buffer_load_dword v{t4}, v{t5}, {s(sB,4)}, s{sCnt} offen sc1
    s_branch {Lp}
    {Lp1}:
    s_waitcnt lgkmcnt(0)
    v_pk_add_f32 {v(F+4,2)}, {v(F+4,2)}, {v(F+6,2)}
    v_pk_add_f32 {v(F+8,2)}, {v(F+8,2)}, {v(F+10,2)}
    v_pk_add_f32 {v(F+4,2)}, {v(F+4,2)}, {v(F+8,2)}
    v_min_u32 v{F+4}, -2, v{F+4}
    v_min_u32 v{F+5}, -2, v{F+5}
    buffer_store_dwordx2 {v(F+4,2)}, v{u1}, {s(sO2,4)}, s{sSXo} offen sc0 sc1''')
    A.label(Lw)
    P.stamp(1)
    wtabs()
    A('s_waitcnt lgkmcnt(0)')
    wslot(2,sQ0,sQ1)
    A(f'''s_add_u32 s{sQ0}, s{sQ0}, 4096
    s_add_u32 s{sQ1}, s{sQ1}, 4096
    s_cmp_ge_u32 s{sV}, 62
    s_cbranch_scc1 {name}_fin''')
    wslot(3,sQ0,sQ1)
    A(f's_cmp_eq_u32 s{sC}, 15\ns_cbranch_scc1 {name}_fin')
    srd(A,sO,P_WS,Z2_SZ,Z2_OFF)
    A(f'''s_cmp_ge_u32 s{sW}, 2
    s_cbranch_scc1 {Lpd}
    s_add_u32 s{sT2}, s{sSX}, 4096
    {Lp2}:''')
    for p in range(NPART):
        A(f'buffer_load_dwordx2 {v(F+4+2*p,2)}, v{u1}, {s(sO2,4)}, s{sSX if p<4 else sT2} offen offset:{1024*(p&3)} sc0 sc1')
    A(f's_add_u32 s{sIt}, s{sIt}, 1\ns_waitcnt vmcnt(0)')
    A(f'v_max_u32 v{F+2}, v{F+4}, v{F+5}')
    for p in range(1,NPART): A(f'v_max3_u32 v{F+2}, v{F+2}, v{F+4+2*p}, v{F+5+2*p}')
    A(f'''v_cmp_eq_u32 vcc, -1, v{F+2}
    s_cmp_ge_u32 s{sIt}, 0x40000
    s_cbranch_scc1 {Lp3}
    s_cbranch_vccnz {Lp2}
    {Lp3}:''')
    for p in range(1,NPART): A(f'v_pk_add_f32 {v(F+4,2)}, {v(F+4,2)}, {v(F+4+2*p,2)}')
    ln_stats(A,F+4,F+5,864,F+2)
    A(f'''v_mul_f32 v{F+4}, v{F+4}, v{F+5}
    ds_write_b32 v{u0}, v{F+5} offset:{RT2}
    ds_write_b32 v{u0}, v{F+4} offset:{MT2}
    s_waitcnt lgkmcnt(0)
    {Lpd}:
    s_barrier''')
    P.stamp(2)
    stabs(MT2,RT2,False)
    def zout(k,so):
        for blk in range(2):
            p=PK+4*blk
            for tt in range(2):
                rt=2*blk+tt; x=ACC(rt,k)
                if k==1: A(f's_waitcnt lgkmcnt({6-2*rt})')
                for h in range(2):
                    A(f'v_pk_fma_f32 {v(x+2*h,2)}, {v(x+2*h,2)}, {v(R_+4*rt+2*h,2)}, {v(M_+4*rt+2*h,2)} neg_lo:[0,0,1] neg_hi:[0,0,1]')
                pack(p+2*tt,x)
            A(f'buffer_store_dwordx4 {v(p,4)}, v{vL16}, {s(sO,4)}, s{so} offen offset:{1024*blk}')
    zout(1,sZ1)
    A(f's_cmp_lt_u32 s{sV}, 34\ns_cbranch_scc1 {name}_fin')
    zout(0,sZ0)
    A.label(f'{name}_fin')
    P.stamp(5)
    P.fin(sW)
    A.label(f'{name}_end')
    A('s_endpgm')
    A.label(Lload)
    vOB=[acc+i for i in range(4)]; vOA=[acc+4+i for i in range(4)]
    A(f'''s_setprio 3
    s_lshl_b32 s{sBstep}, s{sStride}, 5
    v_lshrrev_b32 v{t0}, 3, v{vLane}
    v_bfe_u32 v{t1}, v{vLane}, 1, 2
    v_bfe_u32 v{t2}, v{vLane}, 4, 1
    v_xor_b32 v{t1}, v{t1}, v{t2}
    v_and_b32 v{t3}, 1, v{vLane}
    v_mul_lo_u32 v{t4}, v{t0}, s{sStride}
    v_lshl_add_u32 v{t4}, v{t3}, 4, v{t4}
    v_add_u32 v{t4}, s{sColB}, v{t4}
    v_mov_b32 v{t5}, {BIG}
    s_lshl_b32 s{sT0}, s{sStride}, 3
    s_sub_u32 s{sT0}, s{sT0}, 1024
    s_lshl_b32 s{sT1}, s{sT0}, 1''')
    for t in range(2):
        if t==1: A(f'v_xor_b32 v{t1}, 2, v{t1}\nv_add_u32 v{t4}, s{sT0}, v{t4}')
        A(f'''v_mul_lo_u32 v{t3}, v{t1}, s{sUstr}
        v_add_u32 v{vOB[t]}, v{t3}, v{t4}
        v_cmp_gt_u32 vcc, s{sNv}, v{t1}
        v_cndmask_b32 v{vOB[t]}, v{t5}, v{vOB[t]}, vcc
        v_add_u32 v{vOB[t+2]}, s{sT1}, v{vOB[t]}''')
    A(f'''v_and_b32 v{t1}, 7, v{vLane}
    v_xor_b32 v{t1}, v{t1}, v{t2}
    s_lshl_b32 s{sT0}, s{sRB}, 7
    s_lshl_b32 s{sT1}, s{sNi}, 5
    s_add_u32 s{sT0}, s{sT0}, s{sT1}
    v_add_u32 v{t3}, s{sT0}, v{t0}
    v_mul_u32_u24 v{t3}, 1280, v{t3}''')
    for q in range(4):
        A(f'v_xor_b32 v{t4}, {2*q}, v{t1}\nv_lshl_add_u32 v{vOA[q]}, v{t4}, 4, v{t3}')
        if q: A(f'v_add_u32 v{vOA[q]}, {q*(8*1280-1024)}, v{vOA[q]}')
    A(f'''s_lshl_b32 s{sM0A}, s{sNi}, 12
    s_add_u32 s{sM0B}, s{sM0A}, {BBASE}
    s_and_b32 s{sT0}, s{sRB}, 7
    s_bfe_u32 s{sT1}, s2, 0x20003
    s_mul_i32 s{sT1}, s{sT1}, {ROTK}
    s_add_u32 s{sT0}, s{sT0}, s{sT1}
    s_lshl_b32 s{sT0}, s{sT0}, 2
    s_mov_b32 s{sK0}, 0x{ROTT&0xffffffff:x}
    s_mov_b32 s{sK0+1}, 0x{ROTT>>32:x}
    s_lshr_b64 {s(sK0,2)}, {s(sK0,2)}, s{sT0}
    s_and_b32 s{sT0}, s{sK0}, 15
    s_lshl_b32 s{sAsl}, s{sT0}, 7
    s_mul_i32 s{sBso}, s{sT0}, s{sBstep}
    s_lshl_b32 s{sBso}, s{sBso}, 1
    s_cmp_eq_u32 s{sWin}, 1
    s_waitcnt lgkmcnt(0)
    s_cselect_b32 s{sB}, s{P_WIN}, s{P_WQKV}
    s_cselect_b32 s{sB+1}, s{P_WIN+1}, s{P_WQKV+1}
    s_mul_i32 s{sB+2}, s{sStride}, 640
    s_mov_b32 s{sB+3}, 0x20000''')
    srd(A,sX,P_X,2048*1280)
    order=[('B',0),('A',0),('B',1)]
    for a in range(1,10): order+=[('B',2*a),('A',a),('B',2*a+1)]
    issued=[]
    def issue(it):
        kind,k=it
        if kind=='B':
            A(f's_add_u32 m0, s{sM0B}, {(k%6)*16384}')
            for q in range(4): A(f'buffer_load_dwordx4 v{vOB[q]}, {s(sB,4)}, s{sBso} offen offset:{1024*q} lds')
            A(f's_add_u32 s{sBso}, s{sBso}, s{sBstep}\ns_cmp_eq_u32 s{sBso}, s{sB+2}\ns_cselect_b32 s{sBso}, 0, s{sBso}')
        else:
            A(f's_add_u32 m0, s{sM0A}, {ABASE+(k%3)*16384}')
            for q in range(4): A(f'buffer_load_dwordx4 v{vOA[q]}, {s(sX,4)}, s{sAsl} offen offset:{1024*q} lds')
            A(f's_add_u32 s{sAsl}, s{sAsl}, 128\ns_cmp_eq_u32 s{sAsl}, 1280\ns_cselect_b32 s{sAsl}, 0, s{sAsl}')
        issued.append(it)
    def free_after(it):
        kind,k=it
        return k-6 if kind=='B' else 2*(k-3)+1
    pos=0
    for bar in range(-1,19):
        quota = 3 if bar==-1 else 2
        n=0
        while pos<len(order) and n<quota and free_after(order[pos])<=bar-1:
            issue(order[pos]); pos+=1; n+=1
        needs=[('B',bar+1)]+([('A',(bar+1)//2)] if (bar+1)%2==0 else [])
        last=max(issued.index(x) for x in needs)
        A(f's_waitcnt vmcnt({4*(len(issued)-1-last)})\ns_barrier')
    assert pos==len(order)
    A('s_endpgm')
    nn=A.fix_hazards()
    return A, V.hi, nn
```

```python
from common import *

K2_LDS = 131072
NA=6
XCH=98304
WB=0
KVT=81920
ZT=89600
GC0=-2*0.7978845608028654*LOG2E; GC1=GC0*0.044715
mf=lambda d,a_,b_,c=None: f'v_mfma_f32_16x16x32_bf16 {v(d,4)}, {v(a_,4)}, {v(b_,4)}, {v(d,4) if c is None else c}'

def k2(name):
    A=Asm()
    S=Regs('s',26,86); V=Regs('v',1,256)
    A.raw(f'.p2align 8\n.globl {name}\n.type {name},@function')
    A.label(name)
    A(f's_cmp_ge_u32 s2, 256\ns_cbranch_scc1 {name}_end')
    P=Prof(A,1); P.init(); P.stamp(0)
    load_kernargs(A)
    sR=[S.get(4,4) for _ in range(5)]
    sW=S.get(); sNj=S.get(); sKh=S.get(); sRT=S.get(); sCT=S.get(); sT0=S.get(); sT1=S.get(); sT2=S.get(); sT3=S.get(); sX=S.get()
    sAo=S.get(); sAo2=S.get(); sBo=S.get(); sIt=S.get()
    sK0=S.get(2,2); sK1=S.get(2,2); sMk=S.get(2,2)
    vLane=V.get(); vI=V.get(); vG=V.get(); vL16=V.get(); t0,t1,t2,t3,t4,t5=[V.get() for _ in range(6)]
    vK=V.get(2,2)
    Lside=A.newlabel('k2side')
    A(f'''v_lshrrev_b32 v{t0}, 6, v0
    v_and_b32 v{vLane}, 63, v0
    v_readfirstlane_b32 s{sW}, v{t0}
    v_and_b32 v{vI}, 15, v0
    v_bfe_u32 v{vG}, v0, 4, 2
    v_lshlrev_b32 v{vL16}, 4, v{vLane}
    s_and_b32 s{sT0}, s2, 6
    s_lshl_b32 s{sRT}, s{sT0}, 2
    s_bfe_u32 s{sT1}, s2, 0x30003
    s_add_u32 s{sRT}, s{sRT}, s{sT1}
    s_lshr_b32 s{sCT}, s2, 6
    s_and_b32 s{sT0}, s2, 1
    s_lshl_b32 s{sT0}, s{sT0}, 2
    s_add_u32 s{sCT}, s{sCT}, s{sT0}
    s_and_b32 s{sNj}, s{sW}, 3
    s_lshr_b32 s{sKh}, s{sW}, 2
    s_cmp_eq_u32 s{sCT}, 7
    s_cbranch_scc1 {Lside}''')
    mk=V.mark()
    sWS,sZ2,sST,sQZ,sBS=sR
    NB=6
    RB=[V.get(16,4) for _ in range(NB)]
    acc=V.get(32,4)
    FA=V.get(32,4); U=V.get(8,4)
    Z=V.get(16,4); ZR=V.get(8,4); vB=V.get(2,2)
    vRd=[[V.get() for _ in range(4)] for _ in range(2)]
    vOA=V.get(); vOB=[V.get(),V.get()]; vRow=[V.get(),V.get()]
    sM0=S.get()
    ACC=lambda sl,u: acc+(sl*2+u)*4
    A(f'''s_lshr_b32 s{sT1}, s{sW}, 1
    s_lshl_b32 s{sT1}, s{sT1}, 2
    v_add_u32 v{t1}, s{sT1}, v{vG}
    v_xor_b32 v{t1}, v{t1}, v{vI}
    s_lshl_b32 s{sT0}, s{sRT}, 6
    s_lshl_b32 s{sT1}, s{sW}, 2
    s_add_u32 s{sT0}, s{sT0}, s{sT1}
    v_add_u32 v{t2}, s{sT0}, v{vG}
    v_lshlrev_b32 v{t2}, 12, v{t2}
    v_lshl_add_u32 v{vOA}, v{t1}, 4, v{t2}
    s_lshl_b32 s{sM0}, s{sW}, 10
    s_lshl_b32 s{sT0}, s{sCT}, 3
    s_lshl_b32 s{sT1}, s{sNj}, 1
    s_add_u32 s{sT0}, s{sT0}, s{sT1}
    s_lshl_b32 s{sT1}, s{sT0}, 16
    s_lshl_b32 s{sT2}, s{sKh}, 11
    s_add_u32 s{sT1}, s{sT1}, s{sT2}
    v_add_u32 v{vOB[0]}, s{sT1}, v{vL16}
    v_add_u32 v{vOB[1]}, 0x10000, v{vOB[0]}
    s_and_b32 s{sT1}, s2, {int(os.environ.get('ROT','7'))}
    s_lshl_b32 s{sAo}, s{sT1}, 9
    s_add_u32 s{sAo2}, s{sAo}, 0x20000
    s_lshl_b32 s{sBo}, s{sT1}, 13
    s_waitcnt lgkmcnt(0)''')
    srd(A,sWS,P_WSP,2048*4096); srd(A,sZ2,P_WS,Z2_SZ,Z2_OFF); srd(A,sQZ,P_WS,QZ_SZ,QZ_OFF); srd(A,sBS,P_BSP,4096)
    def ldA(S_):
        o=(S_%NA)*16384
        return [f's_add_u32 m0, s{sM0}, {o}\nbuffer_load_dwordx4 v{vOA}, {s(sWS,4)}, s{sAo} offen lds\ns_add_u32 s{sAo}, s{sAo}, 256\ns_and_b32 s{sAo}, s{sAo}, 0xfff',
                f's_add_u32 m0, s{sM0}, {o+8192}\nbuffer_load_dwordx4 v{vOA}, {s(sWS,4)}, s{sAo2} offen lds\ns_add_u32 s{sAo2}, s{sAo}, 0x20000']
    def ldB(S_):
        L=[]
        for kk in range(2):
            for u in range(2):
                L.append(f'buffer_load_dwordx4 {v(RB[S_%NB]+(kk*2+u)*4,4)}, v{vOB[u]}, {s(sZ2,4)}, s{sBo} offen offset:{1024*kk}')
        L[-1]+=f'\ns_add_u32 s{sBo}, s{sBo}, 4096\ns_and_b32 s{sBo}, s{sBo}, 0xffff'
        return L
    stream=[]
    def emit(tag,L):
        for l in L: A(l); stream.append(tag)
    def rem(tag):
        return len(stream)-1-max(i for i,t in enumerate(stream) if t==tag)
    emit('A0',ldA(0)); emit('B0',ldB(0)); emit('A1',ldA(1))
    A(f'''s_lshl_b32 s{sT1}, s{sRT}, 1
    s_add_u32 s{sT1}, s{sT1}, s{sKh}
    s_mul_i32 s{sT3}, s{sT1}, 94
    s_add_u32 s{sT3}, s{sT3}, s{sT0}
    s_add_u32 s{sT3}, s{sT3}, 40
    s_lshl_b32 s{sT3}, s{sT3}, 10
    v_lshrrev_b32 v{t2}, 2, v{vI}
    v_and_b32 v{t3}, 3, v{vI}
    v_lshl_add_u32 v{t4}, v{t2}, 3, v{t3}
    s_lshl_b32 s{sT2}, s{sKh}, 5
    v_add_u32 v{vRow[0]}, s{sT2}, v{t4}
    v_lshlrev_b32 v{t2}, 1, v{vRow[0]}
    s_lshl_b32 s{sT1}, s{sRT}, 7''')
    emit('Z',[f'buffer_load_dwordx4 {v(ZR,4)}, v{vL16}, {s(sQZ,4)}, s{sT3} offen',
              f'buffer_load_dwordx4 {v(ZR+4,4)}, v{vL16}, {s(sQZ,4)}, s{sT3} offen offset:1024',
              f'buffer_load_ushort v{vB}, v{t2}, {s(sBS,4)}, s{sT1} offen',
              f'buffer_load_ushort v{vB+1}, v{t2}, {s(sBS,4)}, s{sT1} offen offset:8'])
    emit('B1',ldB(1)); emit('A2',ldA(2))
    A(f'''s_lshl_b32 s{sT1}, s{sKh}, 3
    v_add_u32 v{t2}, s{sT1}, v{vG}
    v_xor_b32 v{t2}, v{t2}, v{vI}
    v_lshlrev_b32 v{t2}, 4, v{t2}
    v_lshl_add_u32 v{vRd[0][0]}, v{vRow[0]}, 8, v{t2}
    v_xor_b32 v{vRd[0][1]}, 0x2000, v{vRd[0][0]}
    v_xor_b32 v{vRd[0][2]}, 64, v{vRd[0][0]}
    v_xor_b32 v{vRd[0][3]}, 64, v{vRd[0][1]}
    s_mov_b32 s{sMk}, 0xffff0000
    s_mov_b32 s{sK1}, {fhex(GC1)}
    s_mov_b32 s{sK1+1}, {fhex(GC1)}
    v_mov_b32 v{vK}, {fhex(GC0)}
    v_mov_b32 v{vK+1}, {fhex(GC0)}''')
    for k in range(4): A(f'v_add_u32 v{vRd[1][k]}, {3*16384}, v{vRd[0][k]}')
    def freads(kk,S_):
        sl_=S_%NA
        return [f'ds_read_b128 {v(FA+(kk*4+sl)*4,4)}, v{vRd[sl_//3][kk*2+(sl>>1)]} offset:{(sl_%3)*16384+(sl&1)*1024}' for sl in range(4)]
    G=[]
    for u in range(2):
        for tt in range(2):
            for h in range(2):
                G.append(f'v_lshlrev_b32 v{Z+8*tt+4*u+2*h}, 16, v{ZR+4*u+2*tt+h}'); G.append(f'v_and_b32 v{Z+8*tt+4*u+2*h+1}, s{sMk}, v{ZR+4*u+2*tt+h}')
    for h2 in range(2):
        x=Z+8*h2; tmp=U
        for h in range(4): G.append(f'v_pk_mul_f32 {v(tmp+2*h,2)}, {v(x+2*h,2)}, {v(x+2*h,2)}')
        for h in range(4): G.append(f'v_pk_fma_f32 {v(tmp+2*h,2)}, {v(tmp+2*h,2)}, {s(sK1,2)}, {v(vK,2)}')
        for h in range(4): G.append(f'v_pk_mul_f32 {v(tmp+2*h,2)}, {v(tmp+2*h,2)}, {v(x+2*h,2)}')
        for r in range(8): G.append(f'v_exp_f32 v{tmp+r}, v{tmp+r}')
        for h in range(4): G.append(f'v_pk_add_f32 {v(tmp+2*h,2)}, {v(tmp+2*h,2)}, 1.0 op_sel_hi:[1,0]')
        for r in range(8): G.append(f'v_rcp_f32 v{tmp+r}, v{tmp+r}')
        for h in range(4): G.append(f'v_pk_mul_f32 {v(x+2*h,2)}, {v(x+2*h,2)}, {v(tmp+2*h,2)}')
    G+= [f'v_lshlrev_b32 v{vB}, 16, v{vB}', f'v_lshlrev_b32 v{vB+1}, 16, v{vB+1}']
    P.stamp(1)
    A(f's_waitcnt vmcnt({rem("A0")})\ns_barrier')
    P.stamp(2)
    for l in freads(0,0): A(l)
    pend=[]
    for k in range(2,16):
        pend.append((f'B{k}',ldB(k),k-NB+1))
        if k+1<16: pend.append((f'A{k+1}',ldA(k+1),k+1-NA+1))
    for S_ in range(16):
        need_=[f'B{S_}']+([f'A{S_+1}'] if S_<15 else [])
        A(f's_waitcnt vmcnt({min(rem(t) for t in need_)}) lgkmcnt(0)')
        if S_<15: A('s_barrier')
        if S_==12: P.stamp(4)
        Lq=[]
        quota=4 if S_<3 else 2
        while pend and quota>0 and pend[0][2]<=S_:
            t,L,_=pend.pop(0); Lq+=[(t,l) for l in L]; quota-=1
        g=[]
        if 3<=S_<9:
            n=(len(G)+5)//6; g=G[(S_-3)*n:(S_-2)*n]
        for kk in range(2):
            M=[]
            for sl in range(4):
                for u in range(2): M.append(mf(ACC(sl,u),RB[S_%NB]+(kk*2+u)*4,FA+(kk*4+sl)*4,'0' if (S_==0 and kk==0) else None))
            R=freads(1,S_) if kk==0 else (freads(0,S_+1) if S_<15 else [])
            if kk==1: A('s_waitcnt lgkmcnt(0)')
            for i in range(8):
                A(M[i])
                if i<len(R): A(R[i])
                pos=kk*8+i
                nl=(len(Lq)+(15-pos))//(16-pos) if (pos%2==1 or len(Lq)>(16-pos)//2) else 0
                for _ in range(min(nl,len(Lq))):
                    t,l=Lq.pop(0); A(l); stream.append(t)
                if g: A(g.pop(0))
        assert not Lq
        for l in g: A(l)
    assert not pend
    P.stamp(3)
    srd(A,sWS,P_WS,A3_SZ,A3_OFF)
    A(f'''s_lshl_b32 s{sT0}, s{sW}, 12
    s_add_u32 s{sT0}, s{sT0}, {XCH}
    v_add_u32 v{t0}, s{sT0}, v{vL16}
    v_xor_b32 v{t1}, 0x4000, v{t0}''')
    for q in range(4): A(f'ds_write_b128 v{t0}, {v(acc+16+4*q,4)} offset:{1024*q}')
    A(f'''s_lshl_b32 s{sT0}, s{sRT}, 2
    s_lshl_b32 s{sT1}, s{sKh}, 1
    s_add_u32 s{sT1}, s{sT0}, s{sT1}
    s_lshl_b32 s{sT0}, s{sCT}, 2
    s_add_u32 s{sT0}, s{sT0}, s{sNj}
    s_mul_i32 s{sT1}, s{sT1}, 47
    s_add_u32 s{sT1}, s{sT1}, s{sT0}
    s_add_u32 s{sT1}, s{sT1}, 20
    s_lshl_b32 s{sT1}, s{sT1}, 10
    s_add_u32 s{sT2}, s{sT1}, {47*1024}''')
    for sl in range(2):
        sel='op_sel:[0,1] op_sel_hi:[1,1]' if sl else 'op_sel:[0,0] op_sel_hi:[1,0]'
        for h in range(4):
            x=acc+8*sl+2*h
            A(f'v_pk_add_f32 {v(x,2)}, {v(x,2)}, {v(vB,2)} {sel}')
    A('s_waitcnt lgkmcnt(0)\ns_barrier')
    for q in range(4): A(f'ds_read_b128 {v(FA+4*q,4)}, v{t1} offset:{1024*q}')
    A(f's_cmp_ge_u32 s{sT0}, 27\ns_cbranch_scc1 {name}_fin')
    for sl in range(2):
        A(f's_waitcnt lgkmcnt({2-2*sl})')
        for h in range(4):
            x=acc+8*sl+2*h
            A(f'v_pk_add_f32 {v(x,2)}, {v(x,2)}, {v(FA+8*sl+2*h,2)}')
            A(f'v_pk_mul_f32 {v(x,2)}, {v(x,2)}, {v(Z+8*sl+2*h,2)}')
        for h in range(4):
            x=acc+8*sl+2*h
            A(f'v_cvt_pk_bf16_f32 v{U+4*sl+h}, v{x}, v{x+1}')
        A(f'buffer_store_dwordx4 {v(U+4*sl,4)}, v{vL16}, {s(sWS,4)}, s{sT1 if sl==0 else sT2} offen')
    A(f's_branch {name}_fin')
    hi_main=V.hi
    V.reset(mk)
    A.label(Lside)
    sKV,sQ,sWt,sB3,sA3=sR
    sJ=sNj; sQr=sKh
    PT=V.get(64,4)
    QR=V.get(40,4)
    KF=V.get(36,4); ZF=V.get(36,4)
    PF=V.get(24,4)
    NUM=PT; DEN=PT+20; TM=PT+40
    vHd=V.get(5); vHe=V.get(5)
    A(f'''s_lshr_b32 s{sJ}, s{sRT}, 2
    s_and_b32 s{sQr}, s{sRT}, 3
    s_waitcnt lgkmcnt(0)''')
    srd(A,sKV,P_WS,KVP_SZ,KVP_OFF); srd(A,sQ,P_WS,QZ_SZ,QZ_OFF); srd(A,sB3,P_WS,B3_SZ,B3_OFF); srd(A,sA3,P_WS,A3_SZ,A3_OFF)
    A(f'''s_mul_i32 s{sT0}, s{sJ}, 15
    s_add_u32 s{sT0}, s{sT0}, s{sW}
    s_lshl_b32 s{sT0}, s{sT0}, 10
    s_mov_b32 s{sT1}, s{sT0}''')
    for rb in range(16):
        A(f'buffer_load_dwordx4 {v(PT+4*rb,4)}, v{vL16}, {s(sKV,4)}, s{sT1} offen\ns_add_u32 s{sT1}, s{sT1}, {8*15*1024}')
    A(f'''s_lshl_b32 s{sT1}, s{sQr}, 4
    s_lshl_b32 s{sT2}, s{sW}, 1
    s_add_u32 s{sX}, s{sT1}, s{sT2}
    s_mul_i32 s{sT1}, s{sX}, 94
    s_mul_i32 s{sT2}, s{sJ}, 5
    s_add_u32 s{sT1}, s{sT1}, s{sT2}
    s_lshl_b32 s{sT1}, s{sT1}, 10''')
    for b in range(2):
        for u in range(5):
            if u==4: A(f's_add_u32 s{sT1}, s{sT1}, 4096')
            A(f'buffer_load_dwordx4 {v(QR+(b*5+u)*4,4)}, v{vL16}, {s(sQ,4)}, s{sT1} offen offset:{1024*(u&3)}')
        if b==0: A(f's_add_u32 s{sT1}, s{sT1}, {94*1024-4096}')
    A(f'''s_cmp_lt_u32 s{sRT}, 20
    s_cselect_b32 s{sWt}, s{P_WO}, s{P_WOUT}
    s_cselect_b32 s{sWt+1}, s{P_WO+1}, s{P_WOUT+1}
    s_cselect_b32 s{sT1}, 0, 20
    s_mov_b32 s{sWt+2}, {640*1280}
    s_mov_b32 s{sWt+3}, 0x20000
    s_sub_u32 s{sT1}, s{sRT}, s{sT1}
    s_mul_i32 s{sT1}, s{sT1}, 40960
    s_mul_i32 s{sT2}, s{sW}, 5120
    s_add_u32 s{sT1}, s{sT1}, s{sT2}
    s_mov_b32 m0, s{sT2}
    v_add_u32 v{t0}, 4096, v{vL16}''')
    def dma5():
        for q in range(4): A(f'buffer_load_dwordx4 v{vL16}, {s(sWt,4)}, s{sT1} offen offset:{1024*q} lds')
        A(f's_add_u32 m0, m0, 4096\nbuffer_load_dwordx4 v{t0}, {s(sWt,4)}, s{sT1} offen lds')
    dma5()
    A(f'''s_mov_b32 s{sWt}, s{P_WOUT}
    s_mov_b32 s{sWt+1}, s{P_WOUT+1}
    s_mov_b32 s{sWt+2}, {864*1280}
    s_add_u32 s{sT1}, s{sRT}, 12
    s_mul_i32 s{sT1}, s{sT1}, 40960
    s_add_u32 s{sT1}, s{sT1}, s{sT2}
    s_min_u32 s{sT1}, s{sT1}, s{sWt+2}
    s_add_u32 m0, s{sT2}, 40960''')
    dma5()
    for i in range(5):
        A(f'v_add_u32 v{t1}, {4*i+5}, v{vG}\nv_mul_u32_u24 v{t1}, 52, v{t1}\nv_lshrrev_b32 v{vHd+i}, 8, v{t1}')
        A(f'v_lshrrev_b32 v{t1}, 2, v{vI}\nv_add_u32 v{t1}, {4*i+5}, v{t1}\nv_mul_u32_u24 v{t1}, 52, v{t1}\nv_lshrrev_b32 v{vHe+i}, 8, v{t1}')
    def reduce16():
        for st in (8,4,2,1):
            for q in range(st):
                for h in range(2): A(f'v_pk_add_f32 {v(PT+4*q+2*h,2)}, {v(PT+4*q+2*h,2)}, {v(PT+4*(q+st)+2*h,2)}')
        A(f'v_cvt_pk_bf16_f32 v{t2}, v{PT}, v{PT+1}\nv_cvt_pk_bf16_f32 v{t3}, v{PT+2}, v{PT+3}')
    assert t2%2==0 or True
    A(f's_lshl_b32 s{sT1}, s{sW}, 9\nv_lshl_add_u32 v{t4}, v{vLane}, 3, s{sT1}')
    A('s_waitcnt vmcnt(20)')
    reduce16()
    A(f'ds_write2_b32 v{t4}, v{t2}, v{t3} offset0:0 offset1:1'.replace(f'v{t4},',f'v{t5},',1).replace('ds_write2',f'v_add_u32 v{t5}, {KVT}, v{t4}\nds_write2',1))
    Lz=A.newlabel('k2z'); Lz2=A.newlabel('k2z2')
    A(f'''s_cmp_eq_u32 s{sW}, 7
    s_cbranch_scc1 {Lz}
    s_add_u32 s{sT1}, s{sT0}, 8192
    s_mov_b32 s{sT3}, {8*15*1024}
    v_mov_b32 v{t1}, v{vL16}
    v_add_u32 v{t5}, {KVT+4096}, v{t4}
    s_branch {Lz2}
    {Lz}:''')
    srd(A,sKV,P_WS,ZP_SZ,ZP_OFF)
    A(f'''s_mul_i32 s{sT1}, s{sJ}, 320
    s_movk_i32 s{sT3}, 2560
    v_mov_b32 v{t1}, {BIG}
    v_cmp_gt_u32 vcc, 20, v{vLane}
    v_cndmask_b32 v{t1}, v{t1}, v{vL16}, vcc
    v_lshlrev_b32 v{t5}, 3, v{vLane}
    v_add_u32 v{t5}, {ZT}, v{t5}
    {Lz2}:''')
    for rb in range(16):
        A(f'buffer_load_dwordx4 {v(PT+4*rb,4)}, v{t1}, {s(sKV,4)}, s{sT1} offen\ns_add_u32 s{sT1}, s{sT1}, s{sT3}')
    A('s_waitcnt vmcnt(0)')
    reduce16()
    A(f'ds_write2_b32 v{t5}, v{t2}, v{t3} offset0:0 offset1:1\ns_waitcnt lgkmcnt(0)\ns_barrier')
    P.stamp(1)
    A(f'''v_bfe_u32 v{t1}, v{vLane}, 2, 4
    v_mul_u32_u24 v{t1}, 1280, v{t1}
    s_mul_i32 s{sT1}, s{sW}, 160
    v_add_u32 v{t1}, s{sT1}, v{t1}
    v_and_b32 v{t2}, 3, v{vLane}
    v_lshl_add_u32 v{t3}, v{t2}, 3, v{t1}
    v_lshl_add_u32 v{t1}, v{t2}, 4, v{t1}
    s_mul_i32 s{sT1}, s{sW}, 47
    s_add_u32 s{sT1}, s{sT1}, s{sRT}
    s_mul_i32 s{sT1}, s{sT1}, 5120
    s_add_u32 s{sT2}, s{sT1}, 4096''')
    Lc=A.newlabel('k2c')
    for hf in range(2):
        if hf==1:
            A(f's_cmp_ge_u32 s{sRT}, 15\ns_cbranch_scc1 {Lc}\ns_add_u32 s{sT1}, s{sT1}, {32*5120}\ns_add_u32 s{sT2}, s{sT2}, {32*5120}')
        for u in range(5):
            for h in range(2):
                if u<4: A(f'ds_read_b64_tr_b16 {v(PT+20*hf+4*u+2*h,2)}, v{t1} offset:{WB+hf*40960+h*20480+64*(u>>1)+8*(u&1)}')
                else:   A(f'ds_read_b64_tr_b16 {v(PT+20*hf+4*u+2*h,2)}, v{t3} offset:{WB+hf*40960+h*20480+128}')
        A('s_waitcnt lgkmcnt(0)')
        for u in range(5):
            A(f'buffer_store_dwordx4 {v(PT+20*hf+4*u,4)}, v{vL16}, {s(sB3,4)}, s{sT1 if u<4 else sT2} offen offset:{1024*(u&3)}')
    A.label(Lc)
    combos=[(0,0),(1,0),(1,1),(2,0),(2,1),(3,1),(3,2),(4,1),(4,2)]
    A(f'v_lshlrev_b32 v{t1}, 3, v{vLane}\nv_add_u32 v{t1}, {KVT}, v{t1}\nv_lshlrev_b32 v{t2}, 3, v{vG}\nv_add_u32 v{t2}, {ZT}, v{t2}')
    ZQ=PF
    for i in range(5): A(f'ds_read_b64 {v(ZQ+2*i,2)}, v{t2} offset:{32*i}')
    for n,(ju,pr) in enumerate(combos):
        for hf in range(2):
            i=2*pr+hf
            if i<=4 and abs(i-ju)<=1: A(f'ds_read_b64 {v(KF+4*n+2*hf,2)}, v{t1} offset:{(i*3+ju-i+1)*512}')
        if n==4: A('s_waitcnt lgkmcnt(0)')
    A('s_waitcnt lgkmcnt(0)')
    for n,(ju,pr) in enumerate(combos):
        for hf in range(2):
            i=2*pr+hf; k=KF+4*n+2*hf; z=ZF+4*n+2*hf
            if i<=4 and abs(i-ju)<=1:
                A(f'''v_cmp_eq_u32 vcc, v{vHd+i}, v{vHe+ju}
                v_cndmask_b32 v{k}, 0, v{k}, vcc
                v_cndmask_b32 v{k+1}, 0, v{k+1}, vcc
                v_cndmask_b32 v{z}, 0, v{ZQ+2*i}, vcc
                v_cndmask_b32 v{z+1}, 0, v{ZQ+2*i+1}, vcc''')
            else:
                A(f'v_mov_b32 v{k}, 0\nv_mov_b32 v{k+1}, 0\nv_mov_b32 v{z}, 0\nv_mov_b32 v{z+1}, 0')
    A(f'''s_mov_b32 s{sK0}, {fhex(LOG2E)}
    s_mov_b32 s{sK0+1}, {fhex(LOG2E)}
    s_mov_b32 s{sK1}, {fhex(1e-6)}
    s_mov_b32 s{sK1+1}, {fhex(1e-6)}
    s_mov_b32 s{sMk}, 0xffff0000
    s_mul_i32 s{sT0}, s{sJ}, 5
    s_mul_i32 s{sT1}, s{sX}, {2*47*1024}''')
    for ju in range(5):
        A(f'''s_add_u32 s{sT2}, s{sT0}, {ju}
        s_lshr_b32 s{sT3}, s{sT2}, 1
        s_lshl_b32 s{sT3}, s{sT3}, 10
        s_and_b32 s{sT2}, s{sT2}, 1
        s_lshl_b32 s{sT2}, s{sT2}, 3
        s_add_u32 s{sT2}, s{sT2}, s{sT3}
        v_add_u32 v{vHd+ju}, s{sT2}, v{vL16}''')
    for tt in range(2): A(f'v_mov_b32 v{PF+12*tt+10}, 0\nv_mov_b32 v{PF+12*tt+11}, 0')
    for b in range(2):
        for u in range(5):
            x=TM; tm=TM+8
            for q in range(4):
                r=QR+(b*5+u)*4+q
                A(f'v_lshlrev_b32 v{x+2*q}, 16, v{r}\nv_and_b32 v{x+2*q+1}, s{sMk}, v{r}')
            for q in range(4): A(f'v_pk_mul_f32 {v(tm+2*q,2)}, {v(x+2*q,2)}, {s(sK0,2)}')
            for q in range(8): A(f'v_exp_f32_e64 v{tm+q}, v{tm+q} clamp')
            for q in range(8): A(f'v_max_f32 v{x+q}, 0, v{x+q}')
            for q in range(4): A(f'v_pk_add_f32 {v(tm+2*q,2)}, {v(tm+2*q,2)}, {s(sK1,2)}')
            for q in range(4): A(f'v_pk_add_f32 {v(x+2*q,2)}, {v(x+2*q,2)}, {v(tm+2*q,2)}')
            for q in range(4):
                A(f'v_cvt_pk_bf16_f32 v{PF+12*(q>>1)+2*u+(q&1)}, v{x+2*q}, v{x+2*q+1}')
        for tt in range(2):
            seen=set()
            for n,(ju,pr) in enumerate(combos):
                c=None if ju in seen else '0'
                seen.add(ju)
                A(mf(NUM+4*ju,KF+4*n,PF+12*tt+4*pr,c))
                A(mf(DEN+4*ju,ZF+4*n,PF+12*tt+4*pr,c))
            for ju in range(5): A(f'v_add_f32 v{DEN+4*ju}, s{sK1}, v{DEN+4*ju}')
            for ju in range(5): A(f'v_rcp_f32 v{DEN+4*ju}, v{DEN+4*ju}')
            for ju in range(5):
                for h in range(2): A(f'v_pk_mul_f32 {v(NUM+4*ju+2*h,2)}, {v(NUM+4*ju+2*h,2)}, {v(DEN+4*ju,2)} op_sel_hi:[1,0]')
                A(f'v_cvt_pk_bf16_f32 v{TM+16+2*(ju&3)}, v{NUM+4*ju}, v{NUM+4*ju+1}\nv_cvt_pk_bf16_f32 v{TM+17+2*(ju&3)}, v{NUM+4*ju+2}, v{NUM+4*ju+3}')
                A(f'buffer_store_dwordx2 {v(TM+16+2*(ju&3),2)}, v{vHd+ju}, {s(sA3,4)}, s{sT1} offen')
            A(f's_add_u32 s{sT1}, s{sT1}, {47*1024}')
    A.label(f'{name}_fin')
    P.stamp(5)
    P.fin(sW)
    A.label(f'{name}_end')
    A('s_endpgm')
    nn=A.fix_hazards()
    return A, max(V.hi,hi_main), nn
```

```python
from common import *
K3_BLOCK=512
NSL=8; SLOT=18432
K3_LDS=NSL*SLOT
mf=lambda d,a_,b_,c=None: f'v_mfma_f32_16x16x32_bf16 {v(d,4)}, {v(a_,4)}, {v(b_,4)}, {v(d,4) if c is None else c}'
def k3(name):
    A=Asm()
    S=Regs('s',26,86); V=Regs('v',1,256)
    A.raw(f'.p2align 8\n.globl {name}\n.type {name},@function')
    A.label(name)
    A(f's_cmp_ge_u32 s2, 256\ns_cbranch_scc1 {name}_end')
    P=Prof(A,2); P.init(); P.stamp(0)
    load_kernargs(A)
    sA3=S.get(4,4); sB3=S.get(4,4)
    sW=S.get(); sJ=S.get(); sRT=S.get(); sCT=S.get(); sT0=S.get(); sT1=S.get(); sAo=S.get(); sBo=S.get(); sMA=S.get(); sMB=S.get(); sMk=S.get()
    vLane=V.get(); vL16=V.get(); t0,t1,t2=V.get(),V.get(),V.get(); vRa=[V.get(),V.get(),V.get()]; vRb=[V.get(),V.get(),V.get()]; vO=V.get(); vO2=V.get()
    acc=V.get(20,4); XR=V.get(12,4)
    F=[V.get(48,4),V.get(48,4)]
    Lload=A.newlabel('k3load')
    A(f'''v_lshrrev_b32 v{t0}, 6, v0
    v_and_b32 v{vLane}, 63, v0
    v_readfirstlane_b32 s{sW}, v{t0}
    v_lshlrev_b32 v{vL16}, 4, v{vLane}
    s_and_b32 s{sT0}, s2, 6
    s_lshl_b32 s{sRT}, s{sT0}, 2
    s_bfe_u32 s{sT1}, s2, 0x30003
    s_add_u32 s{sRT}, s{sRT}, s{sT1}
    s_lshr_b32 s{sCT}, s2, 6
    s_and_b32 s{sT0}, s2, 1
    s_lshl_b32 s{sT0}, s{sT0}, 2
    s_add_u32 s{sCT}, s{sCT}, s{sT0}
    s_and_b32 s{sJ}, s{sW}, 3
    s_cmp_ge_u32 s{sW}, 4
    s_cbranch_scc1 {Lload}''')
    NST=24
    sXx,sO=sA3,sB3
    A(f'''v_bfe_u32 v{t0}, v{vLane}, 2, 2
    v_and_b32 v{t1}, 3, v{vLane}
    v_lshl_add_u32 v{t0}, v{t0}, 3, v{t1}
    s_lshl_b32 s{sT0}, s{sRT}, 6
    s_lshr_b32 s{sT1}, s{sW}, 1
    s_lshl_b32 s{sT1}, s{sT1}, 5
    s_add_u32 s{sT0}, s{sT0}, s{sT1}
    s_and_b32 s{sT1}, s{sW}, 1
    s_lshl_b32 s{sT1}, s{sT1}, 2
    s_add_u32 s{sT0}, s{sT0}, s{sT1}
    v_add_u32 v{t0}, s{sT0}, v{t0}
    v_mul_u32_u24 v{t0}, 1280, v{t0}
    s_mul_i32 s{sT0}, s{sCT}, 160
    v_add_u32 v{t0}, s{sT0}, v{t0}
    v_lshrrev_b32 v{t1}, 4, v{vLane}
    v_lshl_add_u32 v{vO}, v{t1}, 4, v{t0}
    v_lshl_add_u32 v{vO2}, v{t1}, 3, v{t0}
    s_lshl_b32 s{sT0}, s{sW}, 11
    v_add_u32 v{vRa[0]}, s{sT0}, v{vL16}
    v_add_u32 v{vRa[1]}, {3*SLOT}, v{vRa[0]}
    v_add_u32 v{vRa[2]}, {6*SLOT}, v{vRa[0]}
    v_add_u32 v{vRb[0]}, 8192, v{vL16}
    v_add_u32 v{vRb[1]}, {3*SLOT+8192}, v{vL16}
    v_add_u32 v{vRb[2]}, {6*SLOT+8192}, v{vL16}
    s_mov_b32 s{sMk}, 0xffff0000
    s_waitcnt lgkmcnt(0)''')
    srd(A,sXx,P_X,2048*1280); srd(A,sO,P_OUT,2048*1280)
    def reads(st):
        sl=st%NSL; o=(sl%3)*SLOT; f=F[st&1]; L=[]
        for q in range(2 if st<NST-1 else 1):
            L.append(f'ds_read_b128 {v(f+24*q,4)}, v{vRa[sl//3]} offset:{o+1024*q}')
            for u in range(5): L.append(f'ds_read_b128 {v(f+24*q+4+4*u,4)}, v{vRb[sl//3]} offset:{o+(q*5+u)*1024}')
        if os.environ.get('K3R'): L=L[:int(os.environ['K3R'])]
        return L
    P.stamp(1)
    A('s_barrier')
    P.stamp(2)
    for l in reads(0): A(l)
    for st in range(NST):
        A('s_waitcnt lgkmcnt(0)')
        if st<NST-1: A('s_barrier')
        R=reads(st+1) if st<NST-1 else []
        f=F[st&1]; M=[]
        for q in range(2 if st<NST-1 else 1):
            for u in range(5): M.append(mf(acc+4*u,f+24*q+4+4*u,f+24*q,'0' if (st==0 and q==0) else None))
        for l in R[:2]: A(l)
        R=R[2:]
        for i,m in enumerate(M):
            A(m)
            if i<len(R): A(R[i])
        if st==12:
            A(f'''buffer_load_dwordx4 {v(XR,4)}, v{vO}, {s(sXx,4)}, 0 offen
            buffer_load_dwordx4 {v(XR+4,4)}, v{vO}, {s(sXx,4)}, 0 offen offset:64
            buffer_load_dwordx2 {v(XR+8,2)}, v{vO2}, {s(sXx,4)}, 0 offen offset:128''')
        if st==NST-2:
            T=V.get(20,4)
            A('s_waitcnt vmcnt(0)')
            for q in range(10):
                A(f'v_lshlrev_b32 v{T+2*q}, 16, v{XR+q}\nv_and_b32 v{T+2*q+1}, s{sMk}, v{XR+q}')
    P.stamp(3)
    for q in range(10): A(f'v_pk_add_f32 {v(T+2*q,2)}, {v(T+2*q,2)}, {v(acc+2*q,2)}')
    for q in range(10): A(f'v_cvt_pk_bf16_f32 v{XR+q}, v{T+2*q}, v{T+2*q+1}')
    A(f'''buffer_store_dwordx4 {v(XR,4)}, v{vO}, {s(sO,4)}, 0 offen
    buffer_store_dwordx4 {v(XR+4,4)}, v{vO}, {s(sO,4)}, 0 offen offset:64
    buffer_store_dwordx2 {v(XR+8,2)}, v{vO2}, {s(sO,4)}, 0 offen offset:128''')
    P.stamp(5)
    P.fin(sW)
    A.label(f'{name}_end')
    A('s_endpgm')
    A.label(Lload)
    A(f'''s_setprio 3
    s_lshl_b32 s{sAo}, s{sRT}, 2
    s_add_u32 s{sAo}, s{sAo}, s{sJ}
    s_mul_i32 s{sAo}, s{sAo}, {47*1024}
    s_lshl_b32 s{sMA}, s{sJ}, 11
    s_mul_i32 s{sBo}, s{sCT}, {47*5120}
    s_and_b32 s{sT0}, s{sJ}, 1
    s_mul_i32 s{sT1}, s{sT0}, 3072
    s_lshl_b32 s{sT0}, s{sT0}, 11
    s_add_u32 s{sT0}, s{sT0}, 6144
    v_add_u32 v{t0}, s{sT1}, v{vL16}
    v_add_u32 v{t1}, s{sT0}, v{vL16}
    s_add_u32 s{sMB}, s{sT1}, 8192
    s_add_u32 s{sMk}, s{sT0}, 8192
    s_waitcnt lgkmcnt(0)''')
    srd(A,sA3,P_WS,A3_SZ,A3_OFF); srd(A,sB3,P_WS,B3_SZ,B3_OFF)
    Lv=A.newlabel('k3lv')
    A(f's_cmp_ge_u32 s{sJ}, 2\ns_cbranch_scc1 {Lv}')
    for var in range(2):
        if var: A.label(Lv)
        cnt=[]
        def issue(st):
            o=(st%NSL)*SLOT
            big=((st&1)==var) if st<NST-1 else (var==0)
            n=0
            if big:
                A(f's_add_u32 m0, s{sMB}, {o}')
                for q in range(3): A(f'buffer_load_dwordx4 v{t0}, {s(sB3,4)}, s{sBo} offen offset:{1024*q} lds')
                n=3
            elif st<NST-1:
                A(f's_add_u32 m0, s{sMk}, {o}')
                for q in range(2): A(f'buffer_load_dwordx4 v{t1}, {s(sB3,4)}, s{sBo} offen offset:{1024*q} lds')
                n=2
            A(f's_add_u32 m0, s{sMA}, {o}')
            A(f's_add_u32 s{sBo}, s{sBo}, 10240')
            A(f'buffer_load_dwordx4 v{vL16}, {s(sA3,4)}, s{sAo} offen lds'); n+=1
            if st<NST-1:
                A(f'buffer_load_dwordx4 v{vL16}, {s(sA3,4)}, s{sAo} offen offset:1024 lds'); n+=1
            A(f's_add_u32 s{sAo}, s{sAo}, 2048')
            cnt.append(n)
        pos=0
        for bar in range(-1,NST-1):
            n=0
            while pos<NST and n<2 and pos-NSL<=bar-1:
                issue(pos); pos+=1; n+=1
            A(f's_waitcnt vmcnt({sum(cnt[bar+2:])})\ns_barrier')
        assert pos==NST
        A('s_endpgm')
    nn=A.fix_hazards()
    return A, V.hi, nn
```

```python
import sys
from common import *
import k1 as K1
kernels=[]
A,nv,nn=K1.k1('k1_kernel'); kernels.append(('k1_kernel',A,nv,(256,K1.K1_BLOCK,K1.K1_LDS))); print('k1 vgpr',nv,'nops',nn,file=sys.stderr)
try:
    import k2 as K2
    A,nv,nn=K2.k2('k2_kernel'); kernels.append(('k2_kernel',A,nv,(256,512,K2.K2_LDS))); print('k2 vgpr',nv,'nops',nn,file=sys.stderr)
    import k3 as K3
    A,nv,nn=K3.k3('k3_kernel'); kernels.append(('k3_kernel',A,nv,(256,K3.K3_BLOCK,K3.K3_LDS))); print('k3 vgpr',nv,'nops',nn,file=sys.stderr)
except ImportError as e:
    print('skip',e,file=sys.stderr)
out=[]
ref=open('cdna_kernels/'+NAME+'.s.ref').read().split('\n')
for l in ref:
    if l.startswith(';') and '@launch' not in l and 'Override' not in l and 'grid=ceil' not in l: out.append(l)
for n,A,nv,(g,b,l) in kernels:
    out.append(f'; @launch kernel={n} grid=({g},1,1) block=({b},1,1) lds={l}')
out.append('.amdgcn_target "amdgcn-amd-amdhsa--gfx950"\n.text')
for n,A,nv,_ in kernels: out.append(A.text())
for n,A,nv,_ in kernels: out.append(descriptor(n,nv))
dst=sys.argv[1] if len(sys.argv)>1 else 'cdna_kernels/'+NAME+'.s'
open(dst,'w').write('\n'.join(out))
```

```python
import sys
from common import *
import k1 as K1
kernels=[]
A,nv,nn=K1.k1('k1_kernel'); kernels.append(('k1_kernel',A,nv,(256,K1.K1_BLOCK,K1.K1_LDS))); print('k1 vgpr',nv,'nops',nn,file=sys.stderr)
try:
    import k2 as K2
    A,nv,nn=K2.k2('k2_kernel'); kernels.append(('k2_kernel',A,nv,(256,512,K2.K2_LDS))); print('k2 vgpr',nv,'nops',nn,file=sys.stderr)
    import k3 as K3
    A,nv,nn=K3.k3('k3_kernel'); kernels.append(('k3_kernel',A,nv,(256,K3.K3_BLOCK,K3.K3_LDS))); print('k3 vgpr',nv,'nops',nn,file=sys.stderr)
except ImportError as e:
    print('skip',e,file=sys.stderr)
out=[]
ref=open('cdna_kernels/'+NAME+'.s.ref').read().split('\n')
for l in ref:
    if l.startswith(';') and '@launch' not in l and 'Override' not in l and 'grid=ceil' not in l: out.append(l)
for n,A,nv,(g,b,l) in kernels:
    out.append(f'; @launch kernel={n} grid=({g},1,1) block=({b},1,1) lds={l}')
out.append('.amdgcn_target "amdgcn-amd-amdhsa--gfx950"\n.text')
import re
for n,A,nv,_ in kernels:
    t=A.text()
    f=os.environ.get('STF'+n[1],'')
    if f: t=re.sub(r'(buffer_store_dwordx[24] [^\n]*?)(?<!sc1)\n',lambda m:m.group(1)+' '+f.replace('_',' ')+'\n',t)
    out.append(t)
for n,A,nv,_ in kernels: out.append(descriptor(n,nv))
dst=sys.argv[1] if len(sys.argv)>1 else 'cdna_kernels/'+NAME+'.s'
open(dst,'w').write('\n'.join(out))
```

```python
from asmlib import *
NAME='parallel_sum__linear_attn_block__mixer_gmlp__prompt'
QZ_OFF=0x0000000; QZ_SZ=64*94*1024
Z2_OFF=0x0700000; Z2_SZ=54*64*1024
NPART=7
ST_OFF=0x0B00000; ST_SZ=16*NPART*1024
ZP_OFF=0x0B20000; ZP_SZ=16*640*4
KVP_OFF=0x0C00000; KVP_SZ=16*8*15*1024
import os
SK=int(os.environ.get('SK','0')); NK3=74 if SK else 47
A3_OFF=0x0E00000; A3_SZ=128*NK3*1024
B3_OFF=0x1800000; B3_SZ=8*47*5*1024
CN_OFF=0x0B40000; CN_SZ=4096
XS_OFF=0x0B50000; HXS=27*1024; XS_SZ=16*HXS
BIG=0x40000000
LOG2E=1.4426950408889634
P_X,P_WQKV,P_WO,P_WIN,P_WSP,P_BSP,P_WOUT,P_OUT,P_DBG,P_WS=4,6,8,12,14,16,18,20,22,24

def load_kernargs(A):
    A('''s_load_dwordx16 s[4:19], s[0:1], 0
    s_load_dwordx4 s[20:23], s[0:1], 64
    s_load_dwordx2 s[24:25], s[0:1], 80''')

def srd(A, d, ptr, size, off=0):
    if off:
        A(f's_add_u32 s{d}, s{ptr}, 0x{off:x}')
        A(f's_addc_u32 s{d+1}, s{ptr+1}, 0')
    else:
        A(f's_mov_b32 s{d}, s{ptr}')
        A(f's_mov_b32 s{d+1}, s{ptr+1}')
    A(f's_mov_b32 s{d+2}, 0x{size:x}')
    A(f's_mov_b32 s{d+3}, 0x20000')

def rbf(A, r):
    A(f'v_cvt_pk_bf16_f32 v{r}, v{r}, v{r}')
    A(f'v_and_b32 v{r}, 0xffff0000, v{r}')

def ln_stats(A, vsum, vsq, n, vt):
    A(f'v_mul_f32 v{vsum}, {fhex(1.0/n)}, v{vsum}')
    A(f'v_mul_f32 v{vsq}, {fhex(1.0/n)}, v{vsq}')
    A(f'v_fma_f32 v{vsq}, -v{vsum}, v{vsum}, v{vsq}')
    A(f'v_max_f32 v{vsq}, 0, v{vsq}')
    rbf(A, vsum)
    rbf(A, vsq)
    A(f'v_add_f32 v{vsq}, {fhex(1e-5)}, v{vsq}')
    rbf(A, vsq)
    A(f'v_sqrt_f32 v{vsq}, v{vsq}')
    rbf(A, vsq)
    A(f'v_rcp_f32 v{vsq}, v{vsq}')

def ln_chain(A, vmean, vvar):
    rbf(A, vmean)
    rbf(A, vvar)
    A(f'v_add_f32 v{vvar}, {fhex(1e-5)}, v{vvar}')
    rbf(A, vvar)
    A(f'v_sqrt_f32 v{vvar}, v{vvar}')
    rbf(A, vvar)
    A(f'v_rcp_f32 v{vvar}, v{vvar}')

def descriptor(name, nv, ns=102):
    acc=(nv+3)//4*4
    return f'''.section .rodata,"a"
.p2align 6
.amdhsa_kernel {name}
  .amdhsa_next_free_vgpr {nv}
  .amdhsa_next_free_sgpr {ns}
  .amdhsa_accum_offset {acc}
  .amdhsa_group_segment_fixed_size 0
  .amdhsa_kernarg_size 88
  .amdhsa_user_sgpr_count 2
  .amdhsa_user_sgpr_kernarg_segment_ptr 1
  .amdhsa_system_sgpr_workgroup_id_x 1
.end_amdhsa_kernel
'''

import os
PROF=int(os.environ.get('PROF','0'))
G1=int(os.environ.get('G1','0'))
PROF_OFF=0x2000000
class Prof:
    def __init__(self,A,kidx): self.A=A; self.n=0; self.kidx=kidx
    def stamp(self,k):
        if not PROF: return
        self.A(f's_memtime s[{86+2*k}:{87+2*k}]\ns_waitcnt lgkmcnt(0)')
    def tl(self,idx,reg=255):
        if not os.environ.get('TL'): return
        self.A(f's_memtime s[84:85]\ns_waitcnt lgkmcnt(0)\nv_writelane_b32 v{reg}, s84, {idx}')
    def tlfin(self,sW,reg=255):
        if not os.environ.get('TL'): return
        A=self.A
        srd(A,4,P_WS,0x100000,PROF_OFF+0x100000*(1+self.kidx))
        A(f's_lshl_b32 s8, s2, 4\ns_add_u32 s8, s8, s{sW}\ns_lshl_b32 s8, s8, 8\nv_and_b32 v1, 63, v0\nv_lshlrev_b32 v1, 2, v1\nbuffer_store_dword v{reg}, v1, s[4:7], s8 offen\ns_waitcnt vmcnt(0)')
    def init(self):
        if not PROF: return
        for k in range(8): self.A(f's_mov_b64 s[{86+2*k}:{87+2*k}], 0')
        self.A('s_memrealtime s[98:99]')
    def fin(self, sW):
        if not PROF: return
        A=self.A
        A('s_waitcnt vmcnt(0)')
        A('s_memtime s[100:101]\ns_waitcnt lgkmcnt(0)')
        srd(A,4,P_WS,0x40000,PROF_OFF+self.kidx*0x40000)
        A(f's_lshl_b32 s8, s2, 3\ns_add_u32 s8, s8, s{sW}\ns_lshl_b32 s8, s8, 6\nv_mov_b32 v1, 0\ns_mov_b64 exec, 1')
        for k in range(8):
            A(f'v_mov_b32 v2, s{86+2*k}\nbuffer_store_dword v2, v1, s[4:7], s8 offen offset:{4*k}')
        A('s_getreg_b32 s9, hwreg(HW_REG_XCC_ID)\nv_mov_b32 v2, s9\nbuffer_store_dword v2, v1, s[4:7], s8 offen offset:40')
        A('s_getreg_b32 s9, hwreg(HW_REG_HW_ID)\nv_mov_b32 v2, s9\nbuffer_store_dword v2, v1, s[4:7], s8 offen offset:44')
        A('s_memrealtime s[10:11]\ns_waitcnt lgkmcnt(0)\nv_mov_b32 v2, s10\nbuffer_store_dword v2, v1, s[4:7], s8 offen offset:48')
```

```python
from common import *
import sys

K1_LDS = 147456+256+3072
K1_BLOCK = 768
ABASE = 0
BBASE = 49152
TB=147712; RT=0; MT=512; CS=1024; RT2=2048; MT2=2560
KVX=0; ZS=0

G_=int(os.environ.get('ROTG','2'))
ROTK={1:1,2:1,3:1,5:2,10:2}[G_]
ROTT=sum(((n%G_)*10//G_)<<(4*n) for n in range(16))
BAR2=int(os.environ.get('BAR2','1'))
XROT=int(os.environ.get('XROT','0'))
def k1(name):
    A=Asm()
    S=Regs('s',26,84); V=Regs('v',1,168)
    A.raw(f'.p2align 8\n.globl {name}\n.type {name},@function')
    A.label(name)
    A(f's_cmp_ge_u32 s2, 256\ns_cbranch_scc1 {name}_end')
    P=Prof(A,0); P.init(); P.stamp(0)
    load_kernargs(A)
    sX=S.get(4,4); sB=S.get(4,4); sO=S.get(4,4); sO2=S.get(4,4)
    sW=S.get(); sNi=S.get(); sMi=S.get(); sRB=S.get(); sC=S.get(); sT0=S.get(); sT1=S.get(); sT2=S.get()
    sColB=S.get(); sUstr=S.get(); sNv=S.get(); sStride=S.get(); sWin=S.get()
    sBrd=S.get(); sAsl=S.get(); sBso=S.get(); sBstep=S.get()
    sM0B=S.get(); sM0A=S.get(); sIt=S.get(); sOnes=S.get()
    sK0=S.get(2,2); sK1=S.get(2,2)
    sPFo=S.get(); sPFi=S.get(); sSX=S.get(); sSXo=S.get(); sCnt=S.get(); sDA=S.get(); sDB=S.get()
    vAc=V.get(); vBc=V.get(); vPF=V.get()
    PL=V.get(36,4)
    vK=PL; vLane,vI,vG,vRow,vL16=PL+2,PL+3,PL+4,PL+5,PL+6
    t0,t1,t2,t3,t4,t5=[PL+7+k for k in range(6)]
    ON=PL+16; EX=PL+20
    acc=V.get(64,4)
    FA=[[V.get(4,4) for _ in range(4)] for _ in range(2)]
    FB=[[V.get(4,4) for _ in range(4)] for _ in range(2)]
    F=FA[0][0]
    ACC=lambda rt,sl: acc+(rt*4+sl)*4
    sXS=S.get(4,4)
    Lload=A.newlabel('k1load')
    TLR=PL+15
    if os.environ.get('TL'): A(f'v_mov_b32 v{TLR}, 0')
    P.tl(0,TLR)
    Lz=A.newlabel('k1lz'); Ld=A.newlabel('k1ld'); L2=A.newlabel('k1l2'); L3=A.newlabel('k1l3'); Lz1=A.newlabel('k1lz1')
    A(f'''v_lshrrev_b32 v{t0}, 6, v0
    v_and_b32 v{vLane}, 63, v0
    v_readfirstlane_b32 s{sW}, v{t0}
    s_and_b32 s{sT0}, s2, 7
    s_lshr_b32 s{sT1}, s2, 3
    s_lshr_b32 s{sRB}, s{sT0}, 2
    s_lshl_b32 s{sRB}, s{sRB}, 3
    s_lshr_b32 s{sT2}, s{sT1}, 2
    s_add_u32 s{sRB}, s{sRB}, s{sT2}
    s_and_b32 s{sC}, s{sT0}, 3
    s_xor_b32 s{sC}, s{sC}, {int(os.environ.get('BX','0'))}
    s_lshl_b32 s{sC}, s{sC}, 1
    s_and_b32 s{sT2}, s{sT1}, 1
    s_add_u32 s{sC}, s{sC}, s{sT2}
    s_and_b32 s{sT2}, s{sT1}, 2
    s_lshl_b32 s{sT2}, s{sT2}, 2
    s_add_u32 s{sC}, s{sC}, s{sT2}
    s_and_b32 s{sNi}, s{sW}, 3
    s_lshr_b32 s{sMi}, s{sW}, 2
    s_mov_b32 s{sUstr}, 32
    s_mov_b32 s{sNv}, 4
    s_mov_b32 s{sWin}, 0
    s_cmp_ge_u32 s{sC}, 8
    s_cbranch_scc1 {Lz}
    s_lshl_b32 s{sColB}, s{sC}, 7
    s_cmp_eq_u32 s{sNi}, 3
    s_cbranch_scc1 {Ld}
    s_mul_i32 s{sColB}, s{sC}, 160
    s_cmp_eq_u32 s{sNi}, 2
    s_cbranch_scc1 {L2}
    s_mul_i32 s{sT0}, s{sNi}, 1280
    s_add_u32 s{sColB}, s{sColB}, s{sT0}
    s_add_u32 s{sColB}, s{sColB}, 1280
    s_branch {Ld}
    {L2}:
    s_add_u32 s{sColB}, s{sColB}, 1408
    s_mov_b32 s{sUstr}, 1280
    s_mov_b32 s{sNv}, 2
    s_branch {Ld}
    {Lz}:
    s_sub_u32 s{sT0}, s{sC}, 8
    s_lshl_b32 s{sT0}, s{sT0}, 1
    s_add_u32 s{sT0}, s{sT0}, s{sNi}
    s_mov_b32 s{sWin}, 1
    s_cmp_ge_u32 s{sNi}, 2
    s_cbranch_scc1 {Lz1}
    s_add_u32 s{sT0}, s{sT0}, 13
    s_lshl_b32 s{sColB}, s{sT0}, 7
    s_cmp_eq_u32 s{sC}, 15
    s_cselect_b32 s{sNv}, 0, 4
    s_branch {Ld}
    {Lz1}:
    s_sub_u32 s{sT0}, s{sT0}, 4
    s_lshl_b32 s{sColB}, s{sT0}, 7
    s_cmp_lg_u32 s{sC}, 8
    s_cbranch_scc1 {Ld}
    s_mov_b32 s{sWin}, 0
    s_add_u32 s{sT0}, s{sNi}, 6
    s_lshl_b32 s{sColB}, s{sT0}, 7
    {Ld}:
    s_cmp_eq_u32 s{sWin}, 1
    s_movk_i32 s{sStride}, 3840
    s_cselect_b32 s{sStride}, 3456, s{sStride}
    s_cmp_eq_u32 s{sMi}, 2
    s_cbranch_scc1 {Lload}''')
    ON=PL+16; CSa=PL+20; RS=PL; RG=PL+4; tA,tB,tC,tD=PL+8,PL+9,PL+10,PL+11; vAb,vBb=PL+12,PL+13
    sv=(vLane,vI,vG,vRow,vL16,t0,t1,t2,t3,t4,t5)
    A(f'v_mov_b32 v{F+48}, v{vLane}')
    vLane,vI,vG,vRow,vL16,t0,t1,t2,t3,t4,t5=[F+48+k for k in range(11)]
    sRd=sBstep; sCd=sBso; sRo=sM0A; sCo=sM0B
    sM1=sK0; sM2=sK1; sM3=10
    if XROT:
        XR1=f's_lshr_b32 s{sT0}, s2, 2\ns_xor_b32 s{sT0}, s{sT0}, s2\ns_and_b32 s{sT0}, s{sT0}, 1\ns_mul_i32 s{sT0}, s{sT0}, 5\ns_bfe_u32 s{sRd}, s2, 0x20003\ns_lshl_b32 s{sRd}, s{sRd}, 1\ns_bfe_u32 s{sT1}, s2, 0x10001\ns_add_u32 s{sRd}, s{sRd}, s{sT1}'
        XR2=f's_and_b32 s{sCd}, s{sRB}, 7'
    else:
        XR1=f's_add_u32 s{sT0}, s{sRB}, s{sC}\ns_and_b32 s{sT0}, s{sT0}, 1\ns_mul_i32 s{sT0}, s{sT0}, 5\ns_lshr_b32 s{sRd}, s{sC}, 1'
        XR2=f's_lshr_b32 s{sCd}, s{sRB}, 1'
    A(f'''v_lshlrev_b32 v{vL16}, 4, v{vLane}
    v_and_b32 v{vI}, 15, v0
    v_bfe_u32 v{vG}, v0, 4, 2
    v_lshrrev_b32 v{t0}, 2, v{vI}
    v_and_b32 v{t1}, 3, v{vI}
    v_lshl_add_u32 v{t0}, v{t0}, 3, v{t1}
    s_lshl_b32 s{sT0}, s{sMi}, 6
    v_add_u32 v{vRow}, s{sT0}, v{t0}
    s_mov_b32 s{sOnes}, 0x3f803f80
    v_lshlrev_b32 v{t0}, 7, v{vRow}
    v_lshrrev_b32 v{t1}, 1, v{vI}
    v_xor_b32 v{t1}, v{t1}, v{vG}
    v_lshl_add_u32 v{vAc}, v{t1}, 4, v{t0}
    v_bfe_u32 v{t0}, v{vLane}, 2, 2
    v_lshlrev_b32 v{t1}, 10, v{vG}
    v_lshl_add_u32 v{t1}, v{t0}, 7, v{t1}
    v_and_b32 v{t2}, 3, v{vLane}
    v_lshl_add_u32 v{t1}, v{t2}, 3, v{t1}
    v_add_u32 v{t1}, {BBASE}, v{t1}
    v_bfe_u32 v{t2}, v{vLane}, 3, 2
    v_xor_b32 v{t2}, s{sNi}, v{t2}
    v_lshl_add_u32 v{vBc}, v{t2}, 5, v{t1}
    s_mov_b32 s{sBrd}, 0x4000
    v_mov_b32 v{vAb}, v{vAc}
    v_mov_b32 v{vBb}, v{vBc}
    s_mov_b32 s{sAsl}, 0
    s_mov_b32 s{sIt}, 0
    {XR1}
    s_mul_i32 s{sRo}, s{sRB}, 27
    s_add_u32 s{sRo}, s{sRo}, s{sT0}
    s_add_u32 s{sRo}, s{sRo}, s{sRd}
    s_lshl_b32 s{sRo}, s{sRo}, 10
    s_cmp_ge_u32 s{sRd}, 5
    s_cselect_b32 s{sRd}, 31, s{sRd}
    s_cselect_b32 s{sRo}, {XS_SZ}, s{sRo}
    {XR2}
    s_mul_i32 s{sCo}, s{sC}, 27
    s_add_u32 s{sCo}, s{sCo}, s{sT0}
    s_add_u32 s{sCo}, s{sCo}, s{sCd}
    s_add_u32 s{sCo}, s{sCo}, 10
    s_lshl_b32 s{sCo}, s{sCo}, 10
    s_cmp_ge_u32 s{sCd}, 5
    s_cselect_b32 s{sCd}, 31, s{sCd}
    s_cselect_b32 s{sCo}, {XS_SZ}, s{sCo}
    s_cmp_eq_u32 s{sMi}, 1
    s_cselect_b32 s{sCd}, 31, s{sCd}
    s_cselect_b32 s{sCo}, {XS_SZ}, s{sCo}
    s_waitcnt lgkmcnt(0)''')
    for r in range(4): A(f'v_mov_b32 v{F+60+r}, -1\nv_mov_b32 v{acc+r}, 0')
    srd(A,sO,P_WS,CN_SZ,CN_OFF)
    srd(A,sXS,P_WS,XS_SZ,XS_OFF)
    Linv=A.newlabel('k1inv'); Linv2=A.newlabel('k1inv'); Lzc=A.newlabel('k1zc')
    A(f'''s_cmp_lg_u32 s{sC}, 15
    s_cbranch_scc1 {Linv}
    s_mul_i32 s{sT0}, s{sRB}, {HXS}
    s_add_u32 s{sXS+2}, s{sT0}, {HXS}
    s_lshl_b32 s{sT1}, s{sW}, 12
    s_add_u32 s{sT0}, s{sT0}, s{sT1}
    s_min_u32 s{sT0}, s{sT0}, s{sXS+2}
    buffer_store_dwordx4 {v(F+60,4)}, v{vL16}, {s(sXS,4)}, s{sT0} offen sc0 sc1
    buffer_store_dwordx4 {v(F+60,4)}, v{vL16}, {s(sXS,4)}, s{sT0} offen offset:1024 sc0 sc1
    buffer_store_dwordx4 {v(F+60,4)}, v{vL16}, {s(sXS,4)}, s{sT0} offen offset:2048 sc0 sc1
    buffer_store_dwordx4 {v(F+60,4)}, v{vL16}, {s(sXS,4)}, s{sT0} offen offset:3072 sc0 sc1
    s_mov_b32 s{sXS+2}, {XS_SZ}
    {Linv}:
    s_cmp_lg_u32 s2, 0
    s_cbranch_scc1 {Lzc}
    v_lshlrev_b32 v{t0}, 4, v0
    buffer_store_dwordx4 {v(acc,4)}, v{t0}, {s(sO,4)}, 0 offen
    {Lzc}:
    s_mov_b32 m0, 147456''')
    for r in range(4,64): A(f'v_mov_b32 v{acc+r}, 0')
    for r in range(4): A(f'v_mov_b32 v{ON+r}, s{sOnes}')
    def reads(setn, aaddr, baddr):
        L=[]
        for k in range(4):
            L.append(f'ds_read_b128 {v(FA[setn][k],4)}, v{aaddr} offset:{(k&1)*512+(k>>1)*4096}')
            L.append(f'ds_read_b64_tr_b16 {v(FB[setn][k],2)}, v{baddr} offset:{k*4096}')
            L.append(f'ds_read_b64_tr_b16 {v(FB[setn][k]+2,2)}, v{baddr} offset:{k*4096+512}')
        return L
    Lq4=A.newlabel('k1pf'); Lq5=A.newlabel('k1pf')
    srd(A,sX,P_WSP,2048*4096)
    A(f'''s_bfe_u32 s{sT1}, s2, 0x20001
    s_lshl_b32 s{sT1}, s{sT1}, 7
    s_lshr_b32 s{sT2}, s2, 3
    s_lshl_b32 s{sT2}, s{sT2}, 2
    s_add_u32 s{sT1}, s{sT1}, s{sT2}
    s_add_u32 s{sT1}, s{sT1}, s{sW}
    s_lshl_b32 s{sPFo}, s{sT1}, 14
    s_mul_i32 s{sPFi}, s{sW}, {int(os.environ.get('PFS','2'))}
    s_lshr_b32 s{sPFi}, s{sPFi}, 1
    s_add_u32 s{sPFi}, s{sPFi}, {int(os.environ.get('PF0','5'))}
    s_and_b32 s{sT1}, s2, {0 if SK else 6}
    s_and_b32 s{sT2}, s2, 1
    s_lshl_b32 s{sT2}, s{sT2}, 3
    s_add_u32 s{sT1}, s{sT1}, s{sT2}
    s_lshl_b32 s{sT1}, s{sT1}, 8
    v_lshl_add_u32 v{t0}, v{vI}, 7, s{sT1}
    v_and_b32 v{t0}, 0xfff, v{t0}
    v_lshl_add_u32 v{vPF}, v{vG}, 12, v{t0}
    s_cmp_lt_u32 s{sW}, 4
    s_cbranch_scc1 {Lq4}
    s_mov_b32 s{sPFi}, {int(os.environ.get('PF4','4'))}
    v_lshlrev_b32 v{vPF}, 7, v{vLane}
    s_lshl_b32 s{sPFo}, s2, 13
    s_mov_b32 s{sX}, s{P_WO}
    s_mov_b32 s{sX+1}, s{P_WO+1}
    s_mov_b32 s{sX+2}, {640*1280}
    s_cmp_lt_u32 s2, 100
    s_cbranch_scc1 {Lq5}
    s_sub_u32 s{sPFo}, s{sPFo}, {100*8192}
    s_mov_b32 s{sX}, s{P_WOUT}
    s_mov_b32 s{sX+1}, s{P_WOUT+1}
    s_mov_b32 s{sX+2}, {864*1280}
    s_cmp_ge_u32 s2, 235
    s_cselect_b32 s{sPFi}, 31, s{sPFi}
    {Lq5}:
    s_cmp_lg_u32 s{sW}, 4
    s_cselect_b32 s{sPFi}, 31, s{sPFi}
    {Lq4}:''')
    A(f's_mov_b32 s{sDA}, 0x20\ns_bitset1_b32 s{sDA}, s{sRd}\ns_bitset1_b32 s{sDA}, s{sCd}\ns_bitset1_b32 s{sDA}, s{sPFi}')
    srd(A,sB,P_DBG,256)
    A(f'''s_lshl_b32 s{sT0}, s{sNi}, 8
    v_lshl_add_u32 v{tA}, v{vLane}, 2, s{sT0}
    s_lshr_b32 s{sT0}, s{sNi}, 1
    s_lshl_b32 s{sT0}, s{sT0}, 8
    s_and_b32 s{sT1}, s{sNi}, 1
    s_lshl_b32 s{sT1}, s{sT1}, 5
    s_add_u32 s{sT0}, s{sT0}, s{sT1}
    v_lshl_add_u32 v{t0}, v{vRow}, 3, s{sT0}
    v_mov_b32 v{t1}, {BIG}
    v_lshrrev_b32 v{t2}, 2, v{vI}
    v_cmp_eq_u32 vcc, v{t2}, v{vG}
    v_cndmask_b32 v{tB}, v{t1}, v{t0}, vcc
    v_cmp_eq_u32 vcc, 0, v{vLane}
    v_cndmask_b32 v{tC}, v{t1}, 0, vcc
    v_mov_b32 v{tD}, 1
    s_lshl_b32 s{sCnt}, s{sRB}, 4
    s_waitcnt vmcnt(0)''')
    P.stamp(1)
    A(f'''s_barrier
    s_cmp_lg_u32 s{sC}, 15
    s_cbranch_scc1 {Linv2}
    s_cmp_lg_u32 s{sW}, 5
    s_cbranch_scc1 {Linv2}
    buffer_store_dword v{tD}, v{tC}, {s(sB,4)}, s{sCnt} offen sc0 sc1
    {Linv2}:''')
    P.stamp(2); P.tl(1,TLR)
    for l in reads(0,vAc,vBc): A(l)
    A(f'v_xor_b32 v{vAc}, 64, v{vAc}\nv_add_u32 v{vBc}, 16384, v{vBc}')
    Lv=A.newlabel('k1v'); Lepi=A.newlabel('k1epi')
    A(f's_cmp_ge_u32 s{sC}, 8\ns_cbranch_scc1 {Lv}')
    mf=lambda d,a_,b_,z: f'v_mfma_f32_16x16x32_bf16 {v(d,4)}, {v(a_,4)}, {v(b_,4)}, {0 if z else v(d,4)}'
    def setmasks(a,b,c):
        for r,x in ((sM1,a),(sM2,b),(sM3,c)): A(f's_mov_b32 s{r}, 0x{x&0xffffffff:x}\ns_mov_b32 s{r+1}, 0x{x>>32:x}')
    def mainloop(nS):
        Ltop=A.newlabel('k1loop')
        A.label(Ltop)
        OOL=[]; HK=[]
        for par in range(2):
            cur=par; nxt=par^1
            A('s_waitcnt lgkmcnt(0)')
            if par==1 or not BAR2: A('s_barrier')
            if os.environ.get('TL'):
                A(f's_lshl_b32 s3, s{sIt}, 1\ns_add_u32 m0, s3, {2+par}'); P.tl('m0',TLR); A('s_mov_b32 m0, 147456')
            R=reads(nxt,vAc,vBc)
            M=[]
            for rt in range(4):
                for k in range(4):
                    a_,b_=v(FA[cur][rt],4),v(FB[cur][k],4)
                    if k>=nS: a_,b_=b_,a_
                    M.append(f'v_mfma_f32_16x16x32_bf16 {v(ACC(rt,k),4)}, {a_}, {b_}, {v(ACC(rt,k),4)}')
            lo,lor,lc,lcr,lr,lrr,lh=[A.newlabel('k1d') for _ in range(7)]
            X={0:f's_add_u32 s{sBrd}, s{sBrd}, 0x4000',1:f's_cmp_eq_u32 s{sBrd}, 0x18000',2:f's_cselect_b32 s{sBrd}, 0, s{sBrd}',
               6:f's_bitcmp1_b32 s{sDA}, s{sIt}',7:f's_cbranch_scc1 {lo}\n{lor}:',
               12:f'v_add_u32 v{vBc}, s{sBrd}, v{vBb}'}
            if par==0:
                X.update({3:f's_add_u32 s{sAsl}, s{sAsl}, 0x4000',4:f's_cmp_eq_u32 s{sAsl}, 0xc000',5:f's_cselect_b32 s{sAsl}, 0, s{sAsl}',10:f'v_add_u32 v{vAc}, s{sAsl}, v{vAb}'})
            else:
                X.update({10:f'v_xor_b32 v{vAc}, 64, v{vAc}',8:f's_add_u32 s{sIt}, s{sIt}, 1',9:f's_cmp_lt_u32 s{sIt}, 10'})
            for idx in range(len(M)):
                A(M[idx])
                if idx<12: A(R[idx])
                if idx in X: A(X[idx])
            OOL.append((par,lc,lcr,lr,lrr))
            if par==0: hk=('5',f'buffer_store_dword v{CSa}, v{tA}, {s(sXS,4)}, s{sCo} offen sc0 sc1\nbuffer_store_dwordx2 {v(RS,2)}, v{tB}, {s(sXS,4)}, s{sRo} offen sc0 sc1')
            else: hk=(f's{sPFi}',f'buffer_load_dword v{vPF}, {s(sX,4)}, s{sPFo} offen lds')
            HK.append(f'{lo}:\ns_cmp_eq_u32 s{sIt}, s{sCd}\ns_cbranch_scc1 {lc}\n{lcr}:\ns_cmp_eq_u32 s{sIt}, s{sRd}\ns_cbranch_scc1 {lr}\n{lrr}:\ns_cmp_lg_u32 s{sIt}, {hk[0]}\ns_cbranch_scc1 {lor}\n{hk[1]}\ns_branch {lor}')
        A(f's_cbranch_scc1 {Ltop}\ns_branch {Lepi}')
        for t in HK: A(t)
        for par,lc,lcr,lr,lrr in OOL:
            A.label(lc)
            for k in range(4): A(mf(CSa+4*k,ON,FB[par][k],par==0))
            if par==1:
                setmasks(0xffff<<16,0xffff<<32,0xffff<<48)
                for k,m in ((1,sM1),(2,sM2),(3,sM3)): A(f'v_cndmask_b32 v{CSa}, v{CSa}, v{CSa+4*k}, {s(m,2)}')
                A(f'v_min_u32 v{CSa}, -2, v{CSa}')
            A(f's_branch {lcr}')
            A.label(lr)
            lj=A.newlabel('k1d')
            for k in range(4):
                ln=A.newlabel('k1d')
                if k<3: A(f's_cmp_lg_u32 s{sNi}, {k}\ns_cbranch_scc1 {ln}')
                A(mf(RS,ON,FA[par][k],par==0)); A(mf(RG,FA[par][k],FA[par][k],par==0))
                if k<3: A(f's_branch {lj}\n{ln}:')
            A.label(lj)
            if par==1:
                setmasks(0x2222222222222222,0x4444444444444444,0x8888888888888888)
                A(f'v_cndmask_b32 v{RS+1}, v{RG}, v{RG+1}, {s(sM1,2)}\nv_cndmask_b32 v{RS+1}, v{RS+1}, v{RG+2}, {s(sM2,2)}\nv_cndmask_b32 v{RS+1}, v{RS+1}, v{RG+3}, {s(sM3,2)}')
                A(f'v_min_u32 v{RS}, -2, v{RS}\nv_min_u32 v{RS+1}, -2, v{RS+1}')
            A(f's_branch {lrr}')
    mainloop(3)
    A.label(Lv)
    mainloop(2)
    vLane,vI,vG,vRow,vL16,t0,t1,t2,t3,t4,t5=sv
    A.label(Lepi)
    P.stamp(3); P.tl(22,TLR)
    srd(A,sO,P_WS,QZ_SZ,QZ_OFF)
    A(f'''v_and_b32 v{vLane}, 63, v0
    v_lshlrev_b32 v{vL16}, 4, v{vLane}
    v_and_b32 v{vI}, 15, v0
    v_bfe_u32 v{vG}, v0, 4, 2
    v_lshrrev_b32 v{t0}, 2, v{vI}
    v_and_b32 v{t1}, 3, v{vI}
    v_lshl_add_u32 v{t0}, v{t0}, 3, v{t1}
    s_lshl_b32 s{sT0}, s{sMi}, 6
    v_add_u32 v{vRow}, s{sT0}, v{t0}
    s_lshl_b32 s{sT0}, s{sMi}, 8
    s_add_u32 s{sT0}, s{sT0}, {TB}
    v_lshl_add_u32 v{t0}, v{vG}, 5, s{sT0}
    s_lshl_b32 s{sT0}, s{sNi}, 8
    s_add_u32 s{sT0}, s{sT0}, {TB}
    v_lshl_add_u32 v{t1}, v{vI}, 2, s{sT0}
    v_lshl_add_u32 v{t3}, v{vG}, 4, s{sT0}
    s_mov_b32 s{sT0}, {TB}
    v_lshl_add_u32 v{t2}, v{vRow}, 2, s{sT0}
    s_waitcnt lgkmcnt(0)
    s_barrier''')
    P.stamp(4); P.tl(23,TLR)
    GC0=-2*0.7978845608028654*LOG2E; GC1=GC0*0.044715
    R_=F; M_=F+16; C_=F+32; RW=F+36; MW=F+40; CW=F+44; PK=F+56; TMP=F+44
    def wtabs():
        for rt in range(4):
            o=(rt>>1)*128+(rt&1)*16
            A(f'ds_read_b32 v{MW+rt}, v{t2} offset:{MT+o}')
            A(f'ds_read_b32 v{RW+rt}, v{t2} offset:{RT+o}')
        for k in (3,2): A(f'ds_read_b128 {v(CW+4*(k-2),4)}, v{t3} offset:{CS+64*k}')
    def stabs(mt,rt_,cs=True):
        if cs:
            for k in range(3): A(f'ds_read_b32 v{C_+k}, v{t1} offset:{CS+64*k}')
        for rt in range(4):
            o=(rt>>1)*128+(rt&1)*16
            A(f'ds_read_b128 {v(M_+4*rt,4)}, v{t0} offset:{mt+o}')
            A(f'ds_read_b128 {v(R_+4*rt,4)}, v{t0} offset:{rt_+o}')
    SEL3=lambda odd: 'op_sel:[0,1,0] op_sel_hi:[1,1,1]' if odd else 'op_sel:[0,0,0] op_sel_hi:[1,0,1]'
    SEL2=lambda odd: 'op_sel:[0,1] op_sel_hi:[1,1]' if odd else 'op_sel:[0,0] op_sel_hi:[1,0]'
    def lnS(rt,k,addeps):
        for h in range(2):
            x=ACC(rt,k)+2*h
            A(f'v_pk_fma_f32 {v(x,2)}, {v(M_+4*rt+2*h,2)}, {v(C_+(k&2),2)}, {v(x,2)} {SEL3(k&1)} neg_lo:[1,0,0] neg_hi:[1,0,0]')
        for h in range(2):
            x=ACC(rt,k)+2*h
            if addeps: A(f'v_pk_fma_f32 {v(x,2)}, {v(x,2)}, {v(R_+4*rt+2*h,2)}, {s(sK1,2)}')
            else: A(f'v_pk_mul_f32 {v(x,2)}, {v(x,2)}, {v(R_+4*rt+2*h,2)}')
    def lnW(rt,k,addeps=False):
        for h in range(2):
            x=ACC(rt,k)+2*h
            A(f'v_pk_fma_f32 {v(x,2)}, {v(CW+4*(k-2)+2*h,2)}, {v(MW+(rt&2),2)}, {v(x,2)} {SEL3(rt&1)} neg_lo:[1,0,0] neg_hi:[1,0,0]')
        for h in range(2):
            x=ACC(rt,k)+2*h
            if addeps: A(f'v_pk_fma_f32 {v(x,2)}, {v(x,2)}, {v(RW+(rt&2),2)}, {s(sK1,2)} {SEL3(rt&1)}')
            else: A(f'v_pk_mul_f32 {v(x,2)}, {v(x,2)}, {v(RW+(rt&2),2)} {SEL2(rt&1)}')
    def phi(x, tmp):
        for h in range(2): A(f'v_pk_mul_f32 {v(tmp+2*h,2)}, {v(x+2*h,2)}, {s(sK0,2)}')
        for r in range(4): A(f'v_exp_f32_e64 v{tmp+r}, v{tmp+r} clamp')
        for r in range(4): A(f'v_max_f32 v{x+r}, s{sK1}, v{x+r}')
        for h in range(2): A(f'v_pk_add_f32 {v(x+2*h,2)}, {v(x+2*h,2)}, {v(tmp+2*h,2)}')
    def gelu(x, tmp):
        for h in range(2): A(f'v_pk_mul_f32 {v(tmp+2*h,2)}, {v(x+2*h,2)}, {v(x+2*h,2)}')
        for h in range(2): A(f'v_pk_fma_f32 {v(tmp+2*h,2)}, {v(tmp+2*h,2)}, {s(sK1,2)}, {v(vK,2)}')
        for h in range(2): A(f'v_pk_mul_f32 {v(tmp+2*h,2)}, {v(tmp+2*h,2)}, {v(x+2*h,2)}')
        for r in range(4): A(f'v_exp_f32 v{tmp+r}, v{tmp+r}')
        for h in range(2): A(f'v_pk_add_f32 {v(tmp+2*h,2)}, {v(tmp+2*h,2)}, 1.0 op_sel_hi:[1,0]')
        for r in range(4): A(f'v_rcp_f32 v{tmp+r}, v{tmp+r}')
        for h in range(2): A(f'v_pk_mul_f32 {v(x+2*h,2)}, {v(x+2*h,2)}, {v(tmp+2*h,2)}')
    def pack(d,x):
        A(f'v_cvt_pk_bf16_f32 v{d}, v{x}, v{x+1}\nv_cvt_pk_bf16_f32 v{d+1}, v{x+2}, v{x+3}')
    def wslot(k,so0,so1,dophi=False):
        for blk in range(2):
            p=PK+4*blk
            for tt in range(2):
                lnW(2*blk+tt,k,dophi)
                if dophi: phi(ACC(2*blk+tt,k),EX+4*tt)
                elif G1: gelu(ACC(2*blk+tt,k),EX+4*tt)
                pack(p+2*tt,ACC(2*blk+tt,k))
            A(f'buffer_store_dwordx4 {v(p,4)}, v{vL16}, {s(sO,4)}, s{so0 if blk==0 else so1} offen')
    LZ=A.newlabel('k1ez')
    A(f'''s_lshl_b32 s{sT0}, s{sRB}, 2
    s_lshl_b32 s{sT1}, s{sMi}, 1
    s_add_u32 s{sT0}, s{sT0}, s{sT1}
    s_mul_i32 s{sT0}, s{sT0}, 94
    s_add_u32 s{sT0}, s{sT0}, s{sNi}
    s_cmp_ge_u32 s{sC}, 8
    s_cbranch_scc1 {LZ}''')
    wtabs()
    Lb3=A.newlabel('k1b3'); lb=A.newlabel('k1bs'); lw=A.newlabel('k1bw')
    sPc,sPl,sGap=sColB,sUstr,sNv
    UT=[0,2,5,7,4]
    tb=sum(u<<(4*n) for n,u in enumerate(UT))
    srd(A,sB,P_WOUT,864*1280)
    A(f'''s_lshr_b32 s{sT1}, s{sW}, 2
    s_cmp_eq_u32 s{sW}, 7
    s_cselect_b32 s{sT1}, 2, s{sT1}
    s_cselect_b32 s{sT2}, 0, s{sNi}
    s_lshl_b32 s{sPc}, s{sRB}, 3
    s_add_u32 s{sPc}, s{sPc}, s{sC}
    s_mul_i32 s{sPc}, s{sPc}, 3
    s_add_u32 s{sPc}, s{sPc}, s{sT1}
    s_cmp_lg_u32 s{sT2}, 0
    s_cbranch_scc1 {lb}
    s_cmp_ge_u32 s{sPc}, 376
    s_cbranch_scc1 {lb}
    s_mul_i32 s{sPl}, s{sT1}, 5120
    s_add_u32 s{sPl}, s{sPl}, 49152
    s_lshr_b32 s{sIt}, s{sPc}, 3
    s_sub_u32 s{sT1}, s{sIt}, 20
    s_mul_i32 s{sT1}, s{sT1}, 40960
    s_mov_b32 s{sGap}, 0
    s_cmp_ge_u32 s{sIt}, 20
    s_cbranch_scc1 {lw}
    s_mov_b32 s{sB}, s{P_WO}
    s_mov_b32 s{sB+1}, s{P_WO+1}
    s_mov_b32 s{sB+2}, {640*1280}
    s_mul_i32 s{sT2}, s{sIt}, 52
    s_lshr_b32 s{sT2}, s{sT2}, 8
    s_mul_i32 s{sT1}, s{sT2}, 5
    s_sub_u32 s{sT1}, s{sIt}, s{sT1}
    s_cmp_eq_u32 s{sT1}, 4
    s_cselect_b32 s{sGap}, {4*20480}, 0
    s_lshl_b32 s{sT1}, s{sT1}, 2
    s_lshr_b32 s{sIt}, 0x{tb:x}, s{sT1}
    s_and_b32 s{sIt}, s{sIt}, 15
    s_mul_i32 s{sT2}, s{sT2}, 10
    s_add_u32 s{sIt}, s{sIt}, s{sT2}
    s_mul_i32 s{sT1}, s{sIt}, 20480
    {lw}:
    s_and_b32 s{sT2}, s{sPc}, 7
    s_mul_i32 s{sT2}, s{sT2}, 160
    s_add_u32 s{sT1}, s{sT1}, s{sT2}
    s_mov_b32 m0, s{sPl}''')
    for q in range(5):
        A(f'''v_add_u32 v{t4}, {64*q}, v{vLane}
        v_mul_u32_u24 v{t5}, 205, v{t4}
        v_lshrrev_b32 v{t5}, 11, v{t5}
        v_mul_u32_u24 v{EX+8}, 70, v{t5}
        v_add_lshl_u32 v{t4}, v{t4}, v{EX+8}, 4
        v_lshrrev_b32 v{t5}, 4, v{t5}
        v_mad_u32_u24 v{t4}, v{t5}, s{sGap}, v{t4}
        buffer_load_dwordx4 v{t4}, {s(sB,4)}, s{sT1} offen lds
        s_add_u32 m0, m0, 1024''')
    A.label(lb)
    A('s_waitcnt lgkmcnt(0)')
    stabs(MT,RT)
    A(f'''s_lshl_b32 s{sT1}, s{sC}, 2
    s_add_u32 s{sT0}, s{sT0}, s{sT1}
    s_lshl_b32 s{sT0}, s{sT0}, 10
    s_add_u32 s{sT1}, s{sT0}, {94*1024}
    s_mov_b32 s{sK0}, {fhex(LOG2E)}
    s_mov_b32 s{sK0+1}, {fhex(LOG2E)}
    s_mov_b32 s{sK1}, {fhex(1e-6)}
    s_mov_b32 s{sK1+1}, {fhex(1e-6)}''')
    wslot(3,sT0,sT1,True)
    A(f'''s_lshl_b32 s{sT0}, s{sNi}, 12
    s_lshl_b32 s{sT1}, s{sMi}, 11
    s_add_u32 s{sT0}, s{sT0}, s{sT1}
    v_add_u32 v{t0}, s{sT0}, v{vL16}
    s_and_b32 s{sT0}, s{sNi}, 1
    s_mul_i32 s{sT0}, s{sT0}, 6
    s_lshr_b32 s{sT2}, s{sNi}, 1
    s_add_u32 s{sT0}, s{sT0}, s{sT2}
    s_lshl_b32 s{sT0}, s{sT0}, 12
    s_add_u32 s{sT0}, s{sT0}, s{sT1}
    v_add_u32 v{t1}, s{sT0}, v{vL16}
    s_waitcnt lgkmcnt(0)''')
    def kvslot(k,dophi,addr,off):
        for blk in range(2):
            p=PK+4*blk
            for tt in range(2):
                rt=2*blk+tt
                lnS(rt,k,dophi)
                if dophi: phi(ACC(rt,k),TMP+4*tt)
                pack(p+2*tt,ACC(rt,k))
            A(f'ds_write_b128 v{addr}, {v(p,4)} offset:{KVX+off+blk*1024}')
    kvslot(1,False,t0,6*4096)
    kvslot(0,True,t0,0)
    Lk=A.newlabel('k1k'); Lk2=A.newlabel('k1k')
    A(f's_cmp_eq_u32 s{sNi}, 0\ns_cbranch_scc1 {Lk}')
    kvslot(2,False,t1,4*4096)
    A(f's_branch {Lk2}')
    A.label(Lk)
    kvslot(2,True,t1,4*4096)
    A.label(Lk2)
    srd(A,sO,P_WS,KVP_SZ,KVP_OFF)
    srd(A,sO2,P_WS,ZP_SZ,ZP_OFF)
    A(f'''s_waitcnt lgkmcnt(0)
    s_barrier
    s_cmp_eq_u32 s{sNi}, 0
    s_cbranch_scc1 {Lb3}
    s_cmp_eq_u32 s{sW}, 7
    s_cbranch_scc1 {Lb3}
    s_sub_u32 s{sT0}, s{sW}, s{sMi}
    s_sub_u32 s{sT0}, s{sT0}, 1
    s_lshl_b32 s{sT1}, s{sT0}, 12
    v_add_u32 v{t0}, s{sT1}, v{vL16}''')
    for b in range(4):
        A(f'ds_read_b128 {v(acc+4*b,4)}, v{t0} offset:{KVX+b*1024}')
        for jj in range(3):
            A(f'ds_read_b128 {v(F+(jj*4+b)*4,4)}, v{t0} offset:{KVX+(5+jj)*4096+b*1024}')
    D=acc+16
    A(f'''s_lshl_b32 s{sT1}, s{sRB}, 3
    s_add_u32 s{sT1}, s{sT1}, s{sC}
    s_mul_i32 s{sT1}, s{sT1}, 15
    s_mul_i32 s{sT2}, s{sT0}, 3
    s_add_u32 s{sT1}, s{sT1}, s{sT2}
    s_lshl_b32 s{sT1}, s{sT1}, 10
    s_mul_i32 s{sIt}, s{sRB}, 2560
    s_mul_i32 s{sT2}, s{sC}, 320
    s_add_u32 s{sIt}, s{sIt}, s{sT2}
    s_lshl_b32 s{sT2}, s{sT0}, 6
    s_add_u32 s{sIt}, s{sIt}, s{sT2}
    v_mov_b32 v{t2}, {BIG}
    v_cmp_eq_u32 vcc, 0, v{vI}
    v_cndmask_b32 v{t1}, v{t2}, v{vLane}, vcc''')
    for b in range(4):
        A(f's_waitcnt lgkmcnt({12-4*b})')
        for jj in range(3):
            A(f'v_mfma_f32_16x16x32_bf16 {v(D+4*jj,4)}, {v(acc+4*b,4)}, {v(F+(jj*4+b)*4,4)}, {v(D+4*jj,4) if b else 0}')
        A(f'v_mfma_f32_16x16x32_bf16 {v(D+12,4)}, {v(acc+4*b,4)}, {v(ON,4)}, {v(D+12,4) if b else 0}')
    for jj in range(3):
        A(f'buffer_store_dwordx4 {v(D+4*jj,4)}, v{vL16}, {s(sO,4)}, s{sT1} offen offset:{1024*jj}')
    A(f'''buffer_store_dwordx4 {v(D+12,4)}, v{t1}, {s(sO2,4)}, s{sIt} offen
    s_branch {name}_fin''')
    A.label(LZ)
    sQ0,sQ1,sZ0,sZ1,sV=sColB,sUstr,sNv,sStride,sWin
    Lw=A.newlabel('k1w')
    stabs(MT,RT)
    A(f'''s_lshl_b32 s{sT1}, s{sC}, 3
    s_add_u32 s{sT0}, s{sT0}, s{sT1}
    s_sub_u32 s{sT0}, s{sT0}, 32
    s_lshl_b32 s{sQ0}, s{sT0}, 10
    s_add_u32 s{sQ1}, s{sQ0}, {94*1024}
    s_mov_b32 s{sK1}, {fhex(GC1)}
    s_mov_b32 s{sK1+1}, {fhex(GC1)}
    v_mov_b32 v{vK}, {fhex(GC0)}
    v_mov_b32 v{vK+1}, {fhex(GC0)}
    s_lshl_b32 s{sV}, s{sC}, 2
    s_add_u32 s{sV}, s{sV}, s{sNi}
    s_cmp_eq_u32 s{sC}, 15
    s_cbranch_scc1 {Lw}
    s_lshl_b32 s{sT0}, s{sC}, 3
    s_add_u32 s{sT0}, s{sT0}, s{sNi}
    s_sub_u32 s{sT0}, s{sT0}, 66
    s_lshl_b32 s{sT0}, s{sT0}, 16
    s_lshl_b32 s{sT1}, s{sRB}, 12
    s_add_u32 s{sT0}, s{sT0}, s{sT1}
    s_lshl_b32 s{sT1}, s{sMi}, 11
    s_add_u32 s{sZ0}, s{sT0}, s{sT1}
    s_add_u32 s{sZ1}, s{sZ0}, {4*65536}
    s_waitcnt lgkmcnt(0)''')
    def wblock():
        A.label(Lw)
        lq=A.newlabel('k1wq'); lq2=A.newlabel('k1wq')
        wtabs()
        A(f's_waitcnt lgkmcnt(0)\ns_cmp_eq_u32 s{sC}, 8\ns_cbranch_scc1 {lq}')
        wslot(2,sQ0,sQ1)
        A(f's_add_u32 s{sQ0}, s{sQ0}, 4096\ns_add_u32 s{sQ1}, s{sQ1}, 4096\ns_cmp_ge_u32 s{sV}, 62\ns_cbranch_scc1 {name}_fin')
        wslot(3,sQ0,sQ1)
        A(f's_cmp_eq_u32 s{sC}, 15\ns_cbranch_scc1 {name}_fin\ns_branch {lq2}')
        A.label(lq)
        A(f's_mov_b32 s{sK0}, {fhex(LOG2E)}\ns_mov_b32 s{sK0+1}, {fhex(LOG2E)}\ns_mov_b32 s{sK1}, {fhex(1e-6)}\ns_mov_b32 s{sK1+1}, {fhex(1e-6)}')
        wslot(2,sQ0,sQ1,True)
        A(f's_add_u32 s{sQ0}, s{sQ0}, 4096\ns_add_u32 s{sQ1}, s{sQ1}, 4096')
        wslot(3,sQ0,sQ1,True)
        A.label(lq2)
    WF=0
    ZT=F+36; a_=lambda i: EX+i; q_=lambda i: F+44+i
    Lz0=A.newlabel('k1z0'); Lz1=A.newlabel('k1z1')
    for rt in range(4):
        x=ACC(rt,1); lnS(rt,1,False); gelu(x,ZT+4*(rt&1))
        for h in range(2): A(f'v_pk_mul_f32 {v(q_(4*rt+2*h),2)}, {v(x+2*h,2)}, {v(x+2*h,2)}')
    A(f's_cmp_lt_u32 s{sV}, 34\ns_cbranch_scc1 {Lz0}')
    for rt in range(4):
        x=ACC(rt,0); lnS(rt,0,False); gelu(x,ZT+4*(rt&1))
        for h in range(2):
            A(f'v_pk_add_f32 {v(a_(4*rt+2*h),2)}, {v(ACC(rt,1)+2*h,2)}, {v(x+2*h,2)}')
            A(f'v_pk_fma_f32 {v(q_(4*rt+2*h),2)}, {v(x+2*h,2)}, {v(x+2*h,2)}, {v(q_(4*rt+2*h),2)}')
    A(f's_branch {Lz1}')
    A.label(Lz0)
    for i in range(16): A(f'v_mov_b32 v{a_(i)}, v{ACC(i>>2,1)+(i&3)}')
    A.label(Lz1)
    for i in range(16): A(f'v_add_f32_dpp v{a_(i)}, v{a_(i)}, v{a_(i)} row_ror:8 row_mask:0xf bank_mask:0x3')
    for i in range(16): A(f'v_add_f32_dpp v{a_(i)}, v{q_(i)}, v{q_(i)} row_ror:8 row_mask:0xf bank_mask:0xc')
    for i in range(8): A(f'v_add_f32_dpp v{a_(i)}, v{a_(i)}, v{a_(i)} row_shl:4 row_mask:0xf bank_mask:0x5')
    for i in range(8): A(f'v_add_f32_dpp v{a_(i)}, v{a_(8+i)}, v{a_(8+i)} row_shr:4 row_mask:0xf bank_mask:0xa')
    for i in range(8): A(f'v_add_f32_dpp v{a_(i)}, v{a_(i)}, v{a_(i)} quad_perm:[1,0,3,2] row_mask:0xf bank_mask:0xf')
    for i in range(8): A(f'v_add_f32_dpp v{a_(i)}, v{a_(i)}, v{a_(i)} quad_perm:[2,3,0,1] row_mask:0xf bank_mask:0xf')
    u0,u1=F,F+1
    Lp=A.newlabel('k1p'); Lp1=A.newlabel('k1p'); Lp2=A.newlabel('k1p'); Lp3=A.newlabel('k1p'); Lpd=A.newlabel('k1p')
    A(f'''v_bfe_u32 v{u0}, v{vLane}, 3, 1
    v_lshlrev_b32 v{u0}, 9, v{u0}
    v_bfe_u32 v{u1}, v{vLane}, 2, 1
    v_lshl_add_u32 v{u0}, v{u1}, 7, v{u0}
    v_lshl_add_u32 v{u0}, v{vG}, 5, v{u0}
    s_lshl_b32 s{sT0}, s{sNi}, 10
    s_lshl_b32 s{sT1}, s{sMi}, 8
    s_add_u32 s{sT0}, s{sT0}, s{sT1}
    v_add_u32 v{u0}, s{sT0}, v{u0}
    ds_write_b128 v{u0}, {v(a_(0),4)} offset:{ZS}
    ds_write_b128 v{u0}, {v(a_(4),4)} offset:{ZS+16}
    s_waitcnt lgkmcnt(0)
    s_barrier''')
    P.stamp(1); P.tl(25,TLR)
    if not WF: wblock()
    srd(A,sO,P_WS,Z2_SZ,Z2_OFF)
    A('s_barrier')
    P.stamp(2); P.tl(26,TLR)
    stabs(MT2,RT2,False)
    def zout(k,so):
        for blk in range(2):
            p=PK+4*blk
            for tt in range(2):
                rt=2*blk+tt; x=ACC(rt,k)
                if k==1: A(f's_waitcnt lgkmcnt({6-2*rt})')
                for h in range(2):
                    A(f'v_pk_fma_f32 {v(x+2*h,2)}, {v(x+2*h,2)}, {v(R_+4*rt+2*h,2)}, {v(M_+4*rt+2*h,2)} neg_lo:[0,0,1] neg_hi:[0,0,1]')
                pack(p+2*tt,x)
            A(f'buffer_store_dwordx4 {v(p,4)}, v{vL16}, {s(sO,4)}, s{so} offen offset:{1024*blk}')
    zout(1,sZ1)
    A(f's_cmp_lt_u32 s{sV}, 34\ns_cbranch_scc1 {name}_fin')
    zout(0,sZ0)
    A(f's_branch {name}_fin')
    A.label(Lb3)
    srd(A,sO2,P_WS,B3_SZ,B3_OFF)
    A(f'''s_cmp_ge_u32 s{sPc}, 376
    s_cbranch_scc1 {name}_fin
    v_bfe_u32 v{t1}, v{vLane}, 2, 4
    v_mul_u32_u24 v{t1}, 160, v{t1}
    v_add_u32 v{t1}, s{sPl}, v{t1}
    v_and_b32 v{t2}, 3, v{vLane}
    v_lshl_add_u32 v{t3}, v{t2}, 3, v{t1}
    v_lshl_add_u32 v{t1}, v{t2}, 4, v{t1}
    s_and_b32 s{sT1}, s{sPc}, 7
    s_mul_i32 s{sT1}, s{sT1}, 47
    s_lshr_b32 s{sT2}, s{sPc}, 3
    s_add_u32 s{sT1}, s{sT1}, s{sT2}
    s_mul_i32 s{sT1}, s{sT1}, 5120
    s_add_u32 s{sT2}, s{sT1}, 4096
    s_waitcnt vmcnt(2)''')
    for u in range(5):
        for h in range(2):
            A(f'ds_read_b64_tr_b16 {v(acc+4*u+2*h,2)}, v{t1 if u<4 else t3} offset:{h*2560+(64*(u>>1)+8*(u&1) if u<4 else 128)}')
    for u in range(5):
        A(f's_waitcnt lgkmcnt({8-2*u})')
        A(f'buffer_store_dwordx4 {v(acc+4*u,4)}, v{vL16}, {s(sO2,4)}, s{sT1 if u<4 else sT2} offen offset:{1024*(u&3)}')
    A.label(f'{name}_fin')
    P.tl(24,TLR); P.tlfin(sW,TLR)
    P.stamp(5)
    P.fin(sW)
    A.label(f'{name}_end')
    A('s_endpgm')
    A.label(Lload)
    vOB=[acc+i for i in range(4)]; vOA=[acc+4+i for i in range(4)]
    A(f'''s_setprio 3
    s_lshl_b32 s{sBstep}, s{sStride}, 5
    v_lshrrev_b32 v{t0}, 3, v{vLane}
    v_bfe_u32 v{t1}, v{vLane}, 1, 2
    v_bfe_u32 v{t2}, v{vLane}, 4, 1
    v_xor_b32 v{t1}, v{t1}, v{t2}
    v_and_b32 v{t3}, 1, v{vLane}
    v_mul_lo_u32 v{t4}, v{t0}, s{sStride}
    v_lshl_add_u32 v{t4}, v{t3}, 4, v{t4}
    v_add_u32 v{t4}, s{sColB}, v{t4}
    v_mov_b32 v{t5}, {BIG}
    s_lshl_b32 s{sT0}, s{sStride}, 3
    s_sub_u32 s{sT0}, s{sT0}, 1024
    s_lshl_b32 s{sT1}, s{sT0}, 1''')
    for t in range(2):
        if t==1: A(f'v_xor_b32 v{t1}, 2, v{t1}\nv_add_u32 v{t4}, s{sT0}, v{t4}')
        A(f'''v_mul_lo_u32 v{t3}, v{t1}, s{sUstr}
        v_add_u32 v{vOB[t]}, v{t3}, v{t4}
        v_cmp_gt_u32 vcc, s{sNv}, v{t1}
        v_cndmask_b32 v{vOB[t]}, v{t5}, v{vOB[t]}, vcc
        v_add_u32 v{vOB[t+2]}, s{sT1}, v{vOB[t]}''')
    A(f'''v_and_b32 v{t1}, 7, v{vLane}
    v_xor_b32 v{t1}, v{t1}, v{t2}
    s_lshl_b32 s{sT0}, s{sRB}, 7
    s_lshl_b32 s{sT1}, s{sNi}, 5
    s_add_u32 s{sT0}, s{sT0}, s{sT1}
    v_add_u32 v{t3}, s{sT0}, v{t0}
    v_mul_u32_u24 v{t3}, 1280, v{t3}''')
    for q in range(4):
        A(f'v_xor_b32 v{t4}, {2*q}, v{t1}\nv_lshl_add_u32 v{vOA[q]}, v{t4}, 4, v{t3}')
        if q: A(f'v_add_u32 v{vOA[q]}, {q*(8*1280-1024)}, v{vOA[q]}')
    A(f'''s_lshl_b32 s{sM0A}, s{sNi}, 12
    s_add_u32 s{sM0B}, s{sM0A}, {BBASE}
    {f's_lshr_b32 s{sT0}, s2, 2' if XROT else f's_mov_b32 s{sT0}, s{sRB}'}
    {f's_xor_b32 s{sT0}, s{sT0}, s2' if XROT else f's_add_u32 s{sT0}, s{sT0}, s{sC}'}
    s_and_b32 s{sT0}, s{sT0}, 1
    s_mul_i32 s{sT0}, s{sT0}, 5
    s_lshl_b32 s{sAsl}, s{sT0}, 7
    s_mul_i32 s{sBso}, s{sT0}, s{sBstep}
    s_lshl_b32 s{sBso}, s{sBso}, 1
    s_cmp_eq_u32 s{sWin}, 1
    s_waitcnt lgkmcnt(0)
    s_cselect_b32 s{sB}, s{P_WIN}, s{P_WQKV}
    s_cselect_b32 s{sB+1}, s{P_WIN+1}, s{P_WQKV+1}
    s_mul_i32 s{sB+2}, s{sStride}, 640
    s_mov_b32 s{sB+3}, 0x20000''')
    srd(A,sX,P_X,2048*1280)
    order=[('B',0),('A',0),('B',1)]
    for a in range(1,10): order+=[('B',2*a),('A',a),('B',2*a+1)]
    issued=[]
    def issue(it):
        kind,k=it
        if kind=='B':
            A(f's_add_u32 m0, s{sM0B}, {(k%6)*16384}')
            for q in range(4): A(f'buffer_load_dwordx4 v{vOB[q]}, {s(sB,4)}, s{sBso} offen offset:{1024*q} lds')
            A(f's_add_u32 s{sBso}, s{sBso}, s{sBstep}\ns_cmp_eq_u32 s{sBso}, s{sB+2}\ns_cselect_b32 s{sBso}, 0, s{sBso}')
        else:
            A(f's_add_u32 m0, s{sM0A}, {ABASE+(k%3)*16384}')
            for q in range(4): A(f'buffer_load_dwordx4 v{vOA[q]}, {s(sX,4)}, s{sAsl} offen offset:{1024*q} lds')
            A(f's_add_u32 s{sAsl}, s{sAsl}, 128\ns_cmp_eq_u32 s{sAsl}, 1280\ns_cselect_b32 s{sAsl}, 0, s{sAsl}')
        issued.append(it)
    def free_after(it):
        kind,k=it
        if BAR2 and kind=='B': return (k-6)|1
        return k-6 if kind=='B' else 2*(k-3)+1
    srd(A,sO,P_DBG,256); srd(A,sXS,P_WS,XS_SZ,XS_OFF)
    vFm,vF,vL4=F+48,F+49,F+50
    CD=F+4; XD=F+16
    def flagsetup():
        A(f'''v_lshlrev_b32 v{vL4}, 2, v{vLane}
        s_lshl_b32 s{sT0}, s{sC}, 4
        s_lshl_b32 s{sT1}, s{sRB}, 4
        v_mov_b32 v{vFm}, s{sT0}
        v_mov_b32 v{t0}, s{sT1}
        v_cmp_gt_u32 vcc, 32, v{vLane}
        v_cndmask_b32 v{vFm}, v{vFm}, v{t0}, vcc
        v_and_b32 v{u1}, 127, v0
        v_lshlrev_b32 v{u0}, 2, v{u1}
        v_lshlrev_b32 v{u1}, 3, v{u1}
        s_bfe_u32 s{sPFi}, s2, 0x20005
        s_cmp_lg_u32 s{sNi}, 0
        s_cselect_b32 s{sPFi}, 99, s{sPFi}
        s_mov_b32 s{sIt}, 0''')
    def dloads():
        A(f's_mul_i32 s{sT0}, s{sC}, {HXS}\ns_lshl_b32 s{sT1}, s{sNi}, 8\ns_add_u32 s{sT0}, s{sT0}, s{sT1}\ns_add_u32 s{sT0}, s{sT0}, 10240\ns_mul_i32 s{sT1}, s{sRB}, {HXS}')
        for p in range(10):
            A(f'buffer_load_dword v{CD+p}, v{vL4}, {s(sXS,4)}, s{sT0} offen offset:{1024*(p&3)} sc0 sc1')
            A(f'buffer_load_dwordx2 {v(XD+2*p,2)}, v{u1}, {s(sXS,4)}, s{sT1} offen offset:{1024*(p&3)} sc0 sc1')
            if p&3==3: A(f's_add_u32 s{sT0}, s{sT0}, 4096\ns_add_u32 s{sT1}, s{sT1}, 4096')
    cnt=[]
    def after(x): return sum(cnt[issued.index(x)+1:])
    FB_,FC_=int(os.environ.get('FB','4')),int(os.environ.get('FC','16'))
    pos=0
    for bar in range(-1,19):
        quota = int(os.environ.get('Q0','6')) if bar==-1 else (2 if not BAR2 else 3)
        n=0
        while pos<len(order) and n<quota and free_after(order[pos])<=bar-1:
            issue(order[pos]); cnt.append(4); pos+=1; n+=1
        if bar==0: flagsetup()
        if FB_<=bar<FB_+4:
            lf=A.newlabel('k1lf')
            A(f's_cmp_lg_u32 s{sPFi}, {bar-FB_}\ns_cbranch_scc1 {lf}\nbuffer_load_dword v{vF}, v{vFm}, {s(sO,4)}, 0 offen sc0 sc1\n{lf}:')
            if bar==FB_+3: issued.append('F'); cnt.append(0)
        if bar==FB_+5:
            A(f'''s_cmp_lg_u32 s{sNi}, 0
            s_cbranch_scc1 {Lp1}
            s_waitcnt vmcnt({after('F')})
            {Lp}:
            v_cmp_ne_u32 vcc, 1, v{vF}
            s_add_u32 s{sIt}, s{sIt}, 1
            s_cmp_ge_u32 s{sIt}, 0x40000
            s_cbranch_vccz {Lp1}
            s_cbranch_scc1 {Lp1}
            s_sleep 32
            buffer_load_dword v{vF}, v{vFm}, {s(sO,4)}, 0 offen sc0 sc1
            s_waitcnt vmcnt(0)
            s_branch {Lp}
            {Lp1}:''')
        if bar==FC_:
            assert pos==len(order)
            dloads(); issued.append('D'); cnt.append(20)
        needs=[('B',bar+1)]+([('A',(bar+1)//2)] if (bar+1)%2==0 else [])
        if BAR2:
            if bar%2==0: continue
            needs.append(('B',bar+2))
        A(f's_waitcnt vmcnt({min(after(x) for x in needs)})\ns_barrier')
    Ld1=A.newlabel('k1ld'); Ld2=A.newlabel('k1ld')
    EB=int(os.environ.get('EB','0'))
    if not EB: A('s_barrier')
    A(f'{Ld1}:\ns_waitcnt vmcnt(0)')
    A(f'v_max_u32 v{vF}, v{CD}, v{CD+1}')
    for q in range(1,5): A(f'v_max3_u32 v{vF}, v{vF}, v{CD+2*q}, v{CD+2*q+1}')
    for q in range(10): A(f'v_max3_u32 v{vF}, v{vF}, v{XD+2*q}, v{XD+2*q+1}')
    A(f'v_cmp_eq_u32 vcc, -1, v{vF}\ns_add_u32 s{sIt}, s{sIt}, 1\ns_cmp_ge_u32 s{sIt}, 0x40000\ns_cbranch_vccz {Ld2}\ns_cbranch_scc1 {Ld2}\ns_sleep 4')
    dloads()
    A(f's_branch {Ld1}\n{Ld2}:')
    for q in range(1,5): A(f'v_pk_add_f32 {v(CD,2)}, {v(CD,2)}, {v(CD+2*q,2)}')
    for q in range(5): A(f'v_pk_add_f32 {v(XD+2*q,2)}, {v(XD+2*q,2)}, {v(XD+10+2*q,2)}')
    for q in range(1,5): A(f'v_pk_add_f32 {v(XD,2)}, {v(XD,2)}, {v(XD+2*q,2)}')
    ln_stats(A,XD,XD+1,640,vF)
    A(f'''v_add_f32 v{CD}, v{CD}, v{CD+1}
    s_lshl_b32 s{sT0}, s{sNi}, 8
    s_add_u32 s{sT0}, s{sT0}, {TB}
    v_add_u32 v{t0}, s{sT0}, v{vL4}
    v_add_u32 v{t1}, {TB}, v{u0}
    ds_write_b32 v{t0}, v{CD} offset:{CS}
    ds_write_b32 v{t1}, v{XD+1} offset:{RT}
    ds_write_b32 v{t1}, v{XD} offset:{MT}
    s_waitcnt lgkmcnt(0)
    {'s_barrier' if EB else ''}
    s_barrier
    s_sub_u32 s{sT1}, s{sC}, 8
    s_cmp_ge_u32 s{sT1}, {NPART}
    s_cbranch_scc1 {name}_end
    s_cmp_ge_u32 s{sNi}, 2
    s_cbranch_scc1 {name}_end
    s_mul_i32 s{sSX}, s{sRB}, {HXS}
    s_add_u32 s{sSX}, s{sSX}, 20480
    s_lshl_b32 s{sSXo}, s{sT1}, 10
    s_add_u32 s{sSXo}, s{sSXo}, s{sSX}
    s_add_u32 s{sT2}, s{sSX}, 4096''')
    srd(A,sO2,P_WS,XS_SZ,XS_OFF)
    A('s_barrier')
    for q in range(4): A(f'ds_read2st64_b32 {v(F+4+2*q,2)}, v{u0} offset0:{ZS//256+4*q} offset1:{ZS//256+4*q+2}')
    A(f'''s_waitcnt lgkmcnt(0)
    v_pk_add_f32 {v(F+4,2)}, {v(F+4,2)}, {v(F+6,2)}
    v_pk_add_f32 {v(F+8,2)}, {v(F+8,2)}, {v(F+10,2)}
    v_pk_add_f32 {v(F+4,2)}, {v(F+4,2)}, {v(F+8,2)}
    v_min_u32 v{F+4}, -2, v{F+4}
    v_min_u32 v{F+5}, -2, v{F+5}
    buffer_store_dwordx2 {v(F+4,2)}, v{u1}, {s(sO2,4)}, s{sSXo} offen sc0 sc1
    s_sleep {os.environ.get('PS0','8')}''')
    def pl(b):
        for p in range(NPART):
            A(f'buffer_load_dwordx2 {v(b+2*p,2)}, v{u1}, {s(sO2,4)}, s{sSX if p<4 else sT2} offen offset:{1024*(p&3)} sc0 sc1')
    def chk(b):
        A(f'v_max_u32 v{F+2}, v{b}, v{b+1}')
        for p in range(1,NPART): A(f'v_max3_u32 v{F+2}, v{F+2}, v{b+2*p}, v{b+1+2*p}')
        A(f'v_cmp_eq_u32 vcc, -1, v{F+2}\ns_nop 1')
    Lp4=A.newlabel('k1p')
    pl(F+8)
    A(f'{Lp2}:\ns_sleep {os.environ.get("PS1","5")}')
    pl(F+24)
    A(f's_add_u32 s{sIt}, s{sIt}, 1\ns_waitcnt vmcnt({NPART})')
    chk(F+8)
    A(f's_cbranch_vccz {Lp3}\ns_cmp_ge_u32 s{sIt}, 0x40000\ns_cbranch_scc1 {Lp3}\ns_sleep {os.environ.get("PS1","5")}')
    pl(F+8)
    A(f's_waitcnt vmcnt({NPART})')
    chk(F+24)
    A(f's_cbranch_vccnz {Lp2}')
    for p in range(1,NPART): A(f'v_pk_add_f32 {v(F+24,2)}, {v(F+24,2)}, {v(F+24+2*p,2)}')
    A(f'v_mov_b32 v{F+40}, v{F+24}\nv_mov_b32 v{F+41}, v{F+25}\ns_branch {Lp4}\n{Lp3}:')
    for p in range(1,NPART): A(f'v_pk_add_f32 {v(F+8,2)}, {v(F+8,2)}, {v(F+8+2*p,2)}')
    A(f'v_mov_b32 v{F+40}, v{F+8}\nv_mov_b32 v{F+41}, v{F+9}\n{Lp4}:')
    ln_stats(A,F+40,F+41,864,F+2)
    A(f'''v_mul_f32 v{F+40}, v{F+40}, v{F+41}
    ds_write_b32 v{t1}, v{F+41} offset:{RT2}
    ds_write_b32 v{t1}, v{F+40} offset:{MT2}
    s_waitcnt lgkmcnt(0)
    s_barrier
    s_endpgm''')
    nn=A.fix_hazards()
    return A, V.hi, nn
```

```python
import sys
from common import *
import k1 as K1
kernels=[]
A,nv,nn=K1.k1('k1_kernel'); kernels.append(('k1_kernel',A,nv,(256,K1.K1_BLOCK,K1.K1_LDS))); print('k1 vgpr',nv,'nops',nn,file=sys.stderr)
if os.environ.get('SPLIT'):
    import k2 as K2
    A,nv,nn=K2.k2('k2_kernel'); kernels.append(('k2_kernel',A,nv,(256,512,K2.K2_LDS))); print('k2 vgpr',nv,'nops',nn,file=sys.stderr)
    import k3 as K3
    A,nv,nn=K3.k3('k3_kernel'); kernels.append(('k3_kernel',A,nv,(256,K3.K3_BLOCK,K3.K3_LDS))); print('k3 vgpr',nv,'nops',nn,file=sys.stderr)
else:
    if SK: import k23_sk as K23
    else: import k23 as K23
    A,nv,nn=K23.k23('k23_kernel'); kernels.append(('k23_kernel',A,nv,(256,512,K23.K23_LDS))); print('k23 vgpr',nv,'nops',nn,file=sys.stderr)
out=[]
ref=open('cdna_kernels/'+NAME+'.s.ref').read().split('\n')
for l in ref:
    if l.startswith(';') and '@launch' not in l and 'Override' not in l and 'grid=ceil' not in l: out.append(l)
for n,A,nv,(g,b,l) in kernels:
    out.append(f'; @launch kernel={n} grid=({g},1,1) block=({b},1,1) lds={l}')
out.append('.amdgcn_target "amdgcn-amd-amdhsa--gfx950"\n.text')
import re
for n,A,nv,_ in kernels:
    t=A.text()
    f=os.environ.get('STF'+n[1],'sc1' if n[1]=='1' else '')
    if f: t=re.sub(r'(buffer_store_dwordx[24] [^\n]*?)(?<!sc1)\n',lambda m:m.group(1)+' '+f.replace('_',' ')+'\n',t)
    out.append(t)
for n,A,nv,_ in kernels: out.append(descriptor(n,nv))
dst=sys.argv[1] if len(sys.argv)>1 else 'cdna_kernels/'+NAME+'.s'
open(dst,'w').write('\n'.join(out))
```
